```python
import torch

def _softmax(x, axis=-1):
    return torch.softmax(x, dim=axis)
def _gelu(x):
    return torch.nn.functional.gelu(x, approximate="tanh")
def _silu(x):
    return torch.nn.functional.silu(x)
def _sigmoid(x):
    return torch.sigmoid(x)
def _layernorm(x, axis=-1, eps=1e-5):
    m = x.mean(dim=axis, keepdim=True)
    v = x.var(dim=axis, keepdim=True, unbiased=False)
    return (x - m) / torch.sqrt(v + eps)
def _scatter_add(tgt, idx, src, axis=0):
    return tgt.clone().index_add_(axis, idx, src)
def _segment_sum(src, seg, n):
    out = torch.zeros((n,) + src.shape[1:], dtype=src.dtype)
    return out.index_add_(0, seg, src)
def _pad(x, pw):
    flat = tuple(v for pair in reversed(pw) for v in pair)
    return torch.nn.functional.pad(x, flat)

kernel_name = 'standalone__mha_block_cached__near_ridge'

def setup_inputs():

    _w = (lambda a: (lambda t: t.to(torch.bfloat16) if t.is_floating_point() else t)(torch.as_tensor(a)))
    B, Sq, D = 32, 96, 448
    H, Sk, Dh = 16, 512, 256
    return {
        "x": _w((lambda *s: torch.randn(*s, dtype=torch.bfloat16) * 0.8)(B, Sq, D)),
        "k_cache": _w((lambda *s: torch.randn(*s, dtype=torch.bfloat16) * 0.8)(B, H, Sk, Dh)),
        "v_cache": _w((lambda *s: torch.randn(*s, dtype=torch.bfloat16) * 0.05)(B, H, Sk, Dh)),
        "wq": _w((lambda *s: torch.randn(*s, dtype=torch.bfloat16) * 0.8)(D, H * Dh) * (D ** -0.5)),
        "wo": _w((lambda *s: torch.randn(*s, dtype=torch.bfloat16) * 0.05)(H * Dh, D) * ((H * Dh) ** -0.5)),
    }

def reference(x, k_cache, v_cache, wq, wo):
    B, Sq, D = x.shape
    H, Dh = 16, 256
    q = (lambda x, *d: x.permute(*d))((x @ wq).reshape(B, Sq, H, Dh), 0, 2, 1, 3)
    scores = torch.einsum("bhqd,bhkd->bhqk", q, k_cache) * (Dh ** -0.5)
    p = _softmax(scores, axis=-1)
    o = torch.einsum("bhqk,bhkd->bhqd", p, v_cache)
    return (lambda x, *d: x.permute(*d))(o, 0, 2, 1, 3).reshape(B, Sq, H * Dh) @ wo
```

```python
NAME = 'standalone__mha_block_cached__near_ridge'
class Asm:
    def __init__(self):
        self.L = []
        self.uid = 0
    def __call__(self, s):
        for line in s.split('\n'):
            line = line.strip()
            if line: self.L.append(('  ' + line) if not line.endswith(':') else line)
    def label(self, base='L'):
        self.uid += 1
        return f'{base}_{self.uid}'
    def text(self):
        return '\n'.join(self.L) + '\n'

def header(launches):
    out = []
    for k, g, b, lds in launches:
        if k is None:
            out.append(f'; @launch grid=({g},1,1) block=({b},1,1) lds={lds}')
        else:
            out.append(f'; @launch kernel={k} grid=({g},1,1) block=({b},1,1) lds={lds}')
    out.append('.amdgcn_target "amdgcn-amd-amdhsa--gfx950"')
    out.append('.text')
    return '\n'.join(out) + '\n'

def kstart(name):
    return f'.globl {name}\n.p2align 8\n.type {name},@function\n{name}:\n'

def kdesc(name, vgpr, sgpr=96, accum=None):
    if accum is None: accum = min(256, (vgpr + 3) // 4 * 4)
    return f'''.amdhsa_kernel {name}
  .amdhsa_next_free_vgpr {vgpr}
  .amdhsa_next_free_sgpr {sgpr}
  .amdhsa_accum_offset {accum}
  .amdhsa_group_segment_fixed_size 0
  .amdhsa_kernarg_size 64
  .amdhsa_user_sgpr_count 2
  .amdhsa_user_sgpr_kernarg_segment_ptr 1
  .amdhsa_system_sgpr_workgroup_id_x 1
.end_amdhsa_kernel
'''
RODATA = '.section .rodata,"a"\n.p2align 6\n'
```

```python
import re
_rng = re.compile(r'^([vsa])\[(\d+):(\d+)\]$')
_one = re.compile(r'^([vsa])(\d+)$')
def regs(op):
    op = op.strip()
    if op.startswith('-'): op = op[1:]
    if op.startswith('abs(') and op.endswith(')'): op = op[4:-1]
    m = _rng.match(op)
    if m: return {(m.group(1), i) for i in range(int(m.group(2)), int(m.group(3)) + 1)}
    m = _one.match(op)
    if m: return {(m.group(1), int(m.group(2)))}
    if op == 'vcc': return {('s', 'vcc')}
    if op == 'm0': return {('s', 'm0')}
    if op == 'exec': return {('s', 'exec')}
    return set()
TRANS = ('v_exp_f32', 'v_log_f32', 'v_rcp_f32', 'v_rsq_f32', 'v_sqrt_f32', 'v_sin_f32', 'v_cos_f32')
class I:
    def __init__(self, text):
        self.text = text
        t = text.split(';')[0].strip()
        self.label = t.endswith(':')
        parts = t.split(None, 1)
        self.mn = parts[0] if parts else ''
        ops = []
        if len(parts) > 1 and not self.label:
            ops = [o.strip() for o in parts[1].split(',')]
            if ops:
                last = ops[-1].split()
                self.mods = last[1:]
                ops[-1] = last[0] if last else ''
        else:
            self.mods = []
        self.ops = ops
        mn = self.mn
        self.kind = 'other'
        self.w = set(); self.r = set(); self.srcc = set(); self.ab = set(); self.sdata = set()
        if self.label or mn.startswith('.') or mn == '': self.kind = 'none'
        elif mn.startswith('v_mfma'):
            self.kind = 'mfma'
            self.w = regs(ops[0]); self.ab = regs(ops[1]) | regs(ops[2]); self.srcc = regs(ops[3])
            self.r = self.ab | self.srcc
            self.passes = 8 if '32x32x16' in mn else 4
        elif mn.startswith('v_'):
            self.kind = 'valu'
            if mn.startswith('v_permlane') :
                self.w = regs(ops[0]) | regs(ops[1]); self.r = set(self.w)
            elif mn.startswith('v_cmp'):
                self.w = regs(ops[0]); self.r = set().union(*[regs(o) for o in ops[1:]])
            elif '_co_' in mn:
                self.w = regs(ops[0]) | regs(ops[1]); self.r = set().union(*[regs(o) for o in ops[2:]])
            else:
                self.w = regs(ops[0]); self.r = set().union(*[regs(o) for o in ops[1:]]) if len(ops) > 1 else set()
                if mn.startswith('v_fmac') or mn.startswith('v_dot2c'): self.r |= self.w
        elif mn.startswith('ds_'):
            self.kind = 'ds'
            if mn.startswith('ds_read') or mn.startswith('ds_bpermute') or mn.startswith('ds_swizzle'):
                self.w = regs(ops[0]); self.r = set().union(*[regs(o) for o in ops[1:]])
            else:
                self.r = set().union(*[regs(o) for o in ops])
        elif mn.startswith('buffer_') or mn.startswith('global_'):
            self.kind = 'vmem'
            self.lds = 'lds' in self.mods
            if 'load' in mn and not self.lds:
                self.w = regs(ops[0]); self.r = set().union(*[regs(o) for o in ops[1:]])
            else:
                self.r = set().union(*[regs(o) for o in ops]) if ops else set()
                if 'store' in mn and ('x4' in mn or 'x3' in mn):
                    self.sdata = regs(ops[0]) if mn.startswith('buffer_') else regs(ops[1])
                if 'atomic' in mn and 'sc0' in self.mods: self.w = regs(ops[0])
            if self.lds: self.r |= {('s', 'm0')}
        elif mn.startswith('s_'):
            self.kind = 'salu'
            if mn in ('s_nop', 's_waitcnt', 's_barrier', 's_endpgm', 's_sleep', 's_setprio') or mn.startswith('s_cbranch') or mn == 's_branch' or mn.startswith('s_cmp') or mn.startswith('s_bitcmp'):
                self.r = set().union(*[regs(o) for o in ops]) if ops else set()
            elif ops:
                self.w = regs(ops[0]); self.r = set().union(*[regs(o) for o in ops[1:]]) if len(ops) > 1 else set()
    def states(self):
        if self.kind == 'none': return 0
        if self.mn == 's_nop': return int(self.ops[0], 0) + 1
        return 1
def vg(s): return {x for x in s if x[0] in 'va'}
def sg(s): return {x for x in s if x[0] == 's'}
def need(p, c):
    n = 0
    if p.kind == 'valu':
        pw = vg(p.w); ps = sg(p.w)
        if c.kind == 'mfma' and pw & c.r: n = max(n, 2)
        if c.kind == 'valu':
            if p.mn.startswith(TRANS) and not c.mn.startswith(TRANS) and pw & c.r: n = max(n, 1)
            if c.mn.startswith('v_permlane') and pw & c.r: n = max(n, 2)
            if (c.mn.startswith('v_readfirstlane') or c.mn.startswith('v_readlane')) and pw & c.r: n = max(n, 1)
            if ps & c.r: n = max(n, 2)
            if ('s', 'exec') in ps: n = max(n, 4)
        if p.mn.startswith('v_dot2') and c.mn != p.mn and pw & (c.r | c.w): n = max(n, 3)
        if c.kind == 'vmem' and ps & c.r: n = max(n, 5)
        if c.kind == 'salu' and ps & c.r: n = max(n, 1)
        if c.kind == 'mfma' and ('s', 'exec') in ps: n = max(n, 4)
    if p.kind == 'mfma':
        big = {8: 12, 4: 8}[p.passes]
        if c.kind == 'valu' and p.w & (c.r | c.w): n = max(n, big)
        if c.kind in ('ds', 'vmem') and p.w & (c.r | c.w): n = max(n, big)
        if c.kind == 'mfma':
            if p.w & c.ab: n = max(n, big)
            if p.w & c.srcc and p.w != c.srcc: n = max(n, big - 2)
        if c.kind == 'valu' and p.srcc & c.w: n = max(n, {8: 7, 4: 3}[p.passes])
    if p.kind == 'salu' and ('s', 'm0') in p.w and c.kind == 'vmem' and getattr(c, 'lds', False): n = max(n, 1)
    if p.kind == 'vmem' and p.sdata:
        if c.kind == 'valu' and p.sdata & c.w: n = max(n, 2)
        elif p.sdata & c.w: n = max(n, 1)
    return n
def fix(lines, window=24):
    out = []
    inserted = 0
    for ln in lines:
        c = I(ln.strip())
        if c.kind != 'none':
            dist = 0; req = 0
            for p in reversed(out[-64:]):
                if p.kind == 'none': continue
                k = need(p, c)
                if k > dist: req = max(req, k - dist)
                dist += p.states()
                if dist > window: break
            while req > 0:
                k = min(req, 16)
                out.append(I(f's_nop {k-1}')); inserted += 1
                req -= k
        out.append(c)
    res = []
    for i in out:
        res.append(i.text if i.label or i.text.startswith('.') else '  ' + i.text)
    return res, inserted
```

```python
import sys
from asmlib import *
import hazard

SLOT = 16384
OBASE = 7 * SLOT
PART = 86016
C_EXP = 0.09016844005556021

import struct
def f32(x): return '0x%08x' % struct.unpack('<I', struct.pack('<f', x))[0]

class Cfg:
    LW = 3
    head_k = [-1, -1, 2, 4, 6, 8, 10]
    opA = list(range(46, 62))
    opB = list(range(70, 86))
    xnt = True
    stamps = False

def schedule(cfg):
    kv = [('K', 0, t) for t in range(16)] + [('V', 0, t) for t in range(16)] + [('K', 1, t) for t in range(16)] + [('V', 1, t) for t in range(16)]
    w = [('Q', 0, i) for i in range(14)] + [('Q', 1, i) for i in range(14)] + [('O', 0, t) for t in range(16)] + [('O', 1, t) for t in range(16)]
    T = {}
    for i, k in enumerate(kv): T[k] = dict(consume=14 + i, earliest=cfg.head_k[i] if i < len(cfg.head_k) else -1)
    for i in range(14):
        T[('Q', 0, i)] = dict(consume=i, earliest=-1)
        T[('Q', 1, i)] = dict(consume=14 + 2 * i, earliest=-1)
    for t in range(16):
        T[('O', 0, t)] = dict(consume=cfg.opA[t], earliest=-1)
        T[('O', 1, t)] = dict(consume=cfg.opB[t], earliest=-1)
    last = max(v['consume'] for v in T.values())
    limit = {7: 36, 8: 36, 9: 44}
    busy = {}
    ikv = iw = 0
    for s in range(-1, last + 1):
        def free(cons, prefer_hi):
            c = [sl for sl in range(10) if busy.get(sl, -10) < s and cons <= limit.get(sl, 10**9)]
            if not c: return None
            return max(c) if prefer_hi else min(c)
        n_w = 0
        while iw < len(w):
            k = w[iw]
            res = sum(1 for kk in w[:iw] if T[kk]['consume'] >= s)
            kv_done = ikv >= len(kv)
            lw = cfg.LW if not kv_done else 7
            if res >= lw or (T[k]['consume'] - s > (2 * cfg.LW if not kv_done else 100)): break
            if n_w >= (3 if s == -1 else 2): break
            sl = free(T[k]['consume'], False)
            if sl is None: break
            T[k]['issue'] = s; T[k]['slot'] = sl; busy[sl] = T[k]['consume']; iw += 1; n_w += 1
        n_kv = 0
        while ikv < len(kv):
            k = kv[ikv]
            if T[k]['earliest'] > s: break
            if n_kv >= (2 if s == -1 else 1): break
            held = sum(1 for kk in kv[:ikv] if T[kk]['consume'] >= s and T[kk]['slot'] < 7)
            sl = free(T[k]['consume'], True)
            if sl is None: break
            if sl < 7 and held >= 7 - cfg.LW: break
            T[k]['issue'] = s; T[k]['slot'] = sl; busy[sl] = T[k]['consume']; ikv += 1; n_kv += 1
    for k, v in T.items():
        assert 'issue' in v and v['issue'] < v['consume'], (k, v)
    return T, last

def nibbles(slots):
    v = 0
    for i, s in enumerate(slots): v |= s << (4 * i)
    return v & 0xffffffff, v >> 32

class VM:
    def __init__(self): self.q = []
    def issue(self, key, n): self.q += [key] * n
    def wait_for(self, pred):
        idx = [i for i, k in enumerate(self.q) if pred(k)]
        if not idx: return None
        n = len(self.q) - 1 - idx[-1]
        self.q = self.q[idx[-1] + 1:]
        return n
    def cap(self, maxn):
        if len(self.q) > maxn:
            self.q = self.q[len(self.q) - maxn:]
            return maxn
        return None

def gen(cfg):
    T, LAST = schedule(cfg)
    a = Asm()
    a('s_cmp_ge_u32 s2, 256')
    a('s_cbranch_scc1 L_end')
    a('s_load_dwordx16 s[4:19], s[0:1], 0')
    if cfg.stamps: a('s_memrealtime s[90:91]')
    a('v_lshrrev_b32 v1, 6, v0')
    a('v_readfirstlane_b32 s44, v1')
    a('v_and_b32 v0, 63, v0')
    a('s_and_b32 s48, s2, 7')
    a('s_lshr_b32 s49, s2, 3')
    a('s_and_b32 s47, s49, 15')
    a('s_and_b32 s50, s48, 1')
    a('s_lshl_b32 s50, s50, 4')
    a('s_add_u32 s45, s50, s47')
    a('s_lshr_b32 s50, s48, 1')
    a('s_lshl_b32 s50, s50, 1')
    a('s_lshr_b32 s51, s49, 4')
    a('s_add_u32 s46, s50, s51')
    a('s_mov_b32 s52, s47')
    a('s_cmp_ge_u32 s52, 7\ns_cselect_b32 s50, 7, 0\ns_sub_u32 s52, s52, s50')
    a('s_cmp_ge_u32 s52, 7\ns_cselect_b32 s50, 7, 0\ns_sub_u32 s52, s52, s50')
    a('s_and_b32 s53, s47, 7')
    a('s_waitcnt lgkmcnt(0)')
    def srd(d, src, nbytes):
        a(f's_mov_b32 s{d}, s{src}\ns_mov_b32 s{d+1}, s{src+1}\ns_mov_b32 s{d+2}, {nbytes}\ns_mov_b32 s{d+3}, 0x20000')
    srd(20, 4, 32 * 96 * 896); srd(24, 6, 1 << 27); srd(28, 8, 1 << 27)
    srd(32, 10, 448 * 8192); srd(36, 12, 4096 * 896); srd(40, 18, 256 * PART + (1 << 20))
    a('v_lshrrev_b32 v1, 4, v0')
    a('v_and_b32 v2, 15, v0')
    a('s_cmp_eq_u32 s44, 7\ns_cbranch_scc1 L_loader')
    a('s_cmp_lt_u32 s44, 3\ns_cbranch_scc1 L_roleA')
    a('v_lshlrev_b32 v3, 2, v1')
    a('v_xor_b32 v3, v3, v2')
    a('v_lshlrev_b32 v3, 4, v3')
    a('v_lshlrev_b32 v4, 13, v1')
    a('v_add_u32 v48, v3, v4')
    for q in range(1, 4): a(f'v_add_u32 v{48+q}, {q*(4*8192-1024)}, v48')
    a('s_lshl_b32 s55, s46, 10')
    a('s_cmp_eq_u32 s44, 3\ns_cbranch_scc1 L_roleX')
    a('s_branch L_roleB')

    def wq_tile_soff(task, i, dst):
        t = i % 7; ps = i // 7
        a(f's_add_u32 s{dst}, s52, {t}')
        a(f's_cmp_ge_u32 s{dst}, 7')
        a(f's_cselect_b32 s50, 7, 0')
        a(f's_sub_u32 s{dst}, s{dst}, s50')
        a(f's_lshl_b32 s{dst}, s{dst}, 19')
        a(f's_add_u32 s{dst}, s{dst}, s55')
        if task * 512 + ps * 256: a(f's_add_u32 s{dst}, s{dst}, {task*512 + ps*256}')

    def x_loads(vm=None):
        a('v_and_b32 v3, 31, v0')
        a('v_mul_u32_u24 v3, 896, v3')
        a('v_lshrrev_b32 v4, 5, v0')
        a('v_lshlrev_b32 v4, 4, v4')
        a('v_add_u32 v3, v3, v4')
        a('s_mul_i32 s57, s45, 96')
        a('s_lshl_b32 s58, s56, 5')
        a('s_add_u32 s57, s57, s58')
        a('s_mul_i32 s57, s57, 896')
        a('s_mov_b32 s58, s52')
        for t in range(7):
            a('s_lshl_b32 s59, s58, 7')
            a('s_add_u32 s59, s59, s57')
            for ks in range(4):
                r = 144 + 16 * t + 4 * ks
                a(f'buffer_load_dwordx4 v[{r}:{r+3}], v3, s[20:23], s59 offen offset:{32*ks}' + (' nt' if cfg.xnt else ''))
            if t < 6:
                a('s_add_u32 s58, s58, 1')
                a('s_cmp_eq_u32 s58, 7')
                a('s_cselect_b32 s58, 0, s58')

    def set_tbl(dst, slots):
        lo, hi = nibbles(slots)
        a(f's_mov_b32 s{dst}, 0x{lo:x}\ns_mov_b32 s{dst+1}, 0x{hi:x}')

    def issue_wq4():
        for q in range(4):
            a(f'buffer_load_dwordx4 v{48+q}, s[32:35], s62 offen offset:{1024*q} lds')

    a('L_roleB:')
    a('s_sub_u32 s56, s44, 4')
    a('s_lshl_b32 s63, s56, 17')
    a('s_lshl_b32 s64, s56, 12')
    vm = VM()
    for s in range(-1, 14):
        if s >= 0: a('s_barrier')
        for i in range(14):
            k = ('Q', 0, i)
            if T[k]['issue'] == s:
                wq_tile_soff(0, i, 62)
                a('s_add_u32 s62, s62, s63')
                a(f's_add_u32 m0, s64, {T[k]["slot"]*SLOT}')
                issue_wq4(); vm.issue(k, 4)
        n = vm.wait_for(lambda k: T[k]['consume'] <= s + 1)
        if n is not None: a(f's_waitcnt vmcnt({n})')
        if s == 12: x_loads()
    set_tbl(66, [T[('Q', 1, i)]['slot'] for i in range(14)])
    set_tbl(68, [T[('K', 1, i)]['slot'] for i in range(16)])
    set_tbl(70, [T[('V', 1, i)]['slot'] for i in range(16)])
    a('s_mov_b32 s65, 1')
    a('s_branch L_qp')
    a('L_roleA:')
    a('s_mov_b32 s56, s44')
    x_loads()
    set_tbl(66, [T[('Q', 0, i)]['slot'] for i in range(14)])
    set_tbl(68, [T[('K', 0, i)]['slot'] for i in range(16)])
    set_tbl(70, [T[('V', 0, i)]['slot'] for i in range(16)])
    a('s_mov_b32 s65, 0')
    a('L_qp:')
    a('v_lshrrev_b32 v3, 2, v2')
    a('v_lshrrev_b32 v4, 1, v1')
    a('v_lshlrev_b32 v4, 3, v4')
    a('v_add_u32 v4, v4, v3')
    a('v_lshlrev_b32 v5, 8, v4')
    a('v_lshlrev_b32 v3, 6, v3')
    a('v_add_u32 v5, v5, v3')
    a('v_and_b32 v3, 1, v1')
    a('v_lshlrev_b32 v3, 5, v3')
    a('v_add_u32 v5, v5, v3')
    a('v_and_b32 v3, 1, v0')
    a('v_lshlrev_b32 v3, 4, v3')
    a('v_add_u32 v5, v5, v3')
    a('v_and_b32 v3, 2, v0')
    a('v_lshlrev_b32 v3, 2, v3')
    a('v_add_u32 v5, v5, v3')
    a('v_and_b32 v3, 0x13, v0')
    a('v_and_b32 v4, 4, v0')
    a('v_lshlrev_b32 v4, 1, v4')
    a('v_or_b32 v3, v3, v4')
    a('v_and_b32 v4, 8, v0')
    a('v_lshrrev_b32 v4, 1, v4')
    a('v_or_b32 v3, v3, v4')
    a('v_lshlrev_b32 v6, 9, v3')
    a('v_and_b32 v3, 15, v3')
    a('v_lshrrev_b32 v4, 5, v0')
    a('v_xor_b32 v3, v3, v4')
    a('v_lshlrev_b32 v3, 4, v3')
    a('v_add_u32 v6, v6, v3')

    def next_slot(tbl):
        a(f's_and_b32 s50, s{tbl}, 15')
        a(f's_lshr_b64 s[{tbl}:{tbl+1}], s[{tbl}:{tbl+1}], 4')
        a('s_lshl_b32 s50, s50, 14')

    FB = 16
    def t_step(acc0, bfrag, first, fillers=None, pre=None):
        a('v_add_u32 v8, s50, v5')
        for db in range(1, 4): a(f'v_xor_b32 v{8+db}, {db<<6}, v8')
        seq = [(ks, db) for ks in range(4) for db in range(4)]
        def rd(i):
            ks, db = seq[i]; r = FB + 4 * (i % 4)
            a(f'ds_read_b64_tr_b16 v[{r}:{r+1}], v{8+db} offset:{ks*4096}')
            a(f'ds_read_b64_tr_b16 v[{r+2}:{r+3}], v{8+db} offset:{ks*4096+1024}')
        for i in range(4): rd(i)
        if pre: pre()
        fl = list(fillers) if fillers else []
        per = (len(fl) + 15) // 16
        for i in range(16):
            ks, db = seq[i]; r = FB + 4 * (i % 4)
            a(f's_waitcnt lgkmcnt({2*min(3, 15-i)})')
            d = acc0 + 16 * db; b = bfrag(ks)
            c = '0' if (first and ks == 0) else f'v[{d}:{d+15}]'
            a(f'v_mfma_f32_32x32x16_bf16 v[{d}:{d+15}], v[{r}:{r+3}], v[{b}:{b+3}], {c}')
            if i + 4 < 16: rd(i + 4)
            for f in fl[i * per:(i + 1) * per]: a(f)

    for ps in range(2):
        for t in range(7):
            a('s_barrier')
            next_slot(66)
            pre = (lambda t=t: a(f's_waitcnt vmcnt({28-4*(t+1)})')) if ps == 0 else None
            t_step(64, lambda ks, t=t: 144 + 16 * t + 4 * ks, t == 0, pre=pre)
            if t == 6:
                for i in range(32):
                    a(f'v_cvt_pk_bf16_f32 v{32+32*ps+i}, v{64+2*i}, v{65+2*i}')
            lab = a.label('L_qb')
            a(f's_cmp_eq_u32 s65, 0\ns_cbranch_scc1 {lab}')
            a('s_barrier')
            if ps == 1 and t == 6:
                a('s_barrier\ns_barrier\ns_barrier\ns_barrier')
            a(f'{lab}:')
    def post(t):
        acc = 96 + 16 * (t % 2)
        L = []
        for i in range(8):
            L.append(f'v_cvt_pk_bf16_f32 v{128+8*t+i}, v{acc+2*i}, v{acc+2*i+1}')
            if t == 0 and i == 0: L.append(f'v_max_f32 v7, v{acc}, v{acc+1}')
            else: L.append(f'v_max3_f32 v7, v7, v{acc+2*i}, v{acc+2*i+1}')
        return L
    for t in range(16):
        a('s_barrier')
        next_slot(68)
        a('v_add_u32 v8, s50, v6')
        seq = [e + 8 * u for e in range(8) for u in range(2)]
        def rd(i):
            ks = seq[i]; r = FB + 4 * (i % 4); e = ks & 7
            ar = 8 if e == 0 else 9 + (e % 2)
            if ks < 8 and e: a(f'v_xor_b32 v{ar}, {e<<5}, v8')
            a(f'ds_read_b128 v[{r}:{r+3}], v{ar} offset:{(ks>>3)*256}')
        for i in range(4): rd(i)
        fl = post(t - 1) if t else []
        acc = 96 + 16 * (t % 2)
        for i in range(16):
            ks = seq[i]; r = FB + 4 * (i % 4)
            a(f's_waitcnt lgkmcnt({min(3, 15-i)})')
            c = '0' if i == 0 else f'v[{acc}:{acc+15}]'
            a(f'v_mfma_f32_32x32x16_bf16 v[{acc}:{acc+15}], v[{r}:{r+3}], v[{32+4*ks}:{35+4*ks}], {c}')
            if i + 4 < 16: rd(i + 4)
            if i >= 2 and i < 10:
                for f in fl[2 * (i - 2):2 * (i - 1)]: a(f)
    for f in post(15): a(f)
    a('v_mov_b32 v12, v7')
    a('v_permlane32_swap_b32 v7, v12')
    a('v_max_f32 v7, v7, v12')
    a(f's_mov_b32 s72, {f32(C_EXP)}')
    a('s_mov_b32 s73, 0xffff0000')
    a('v_mul_f32 v7, s72, v7')
    a('v_sub_f32 v7, 0, v7')
    a('v_mov_b32 v13, 0')
    a('v_mov_b32 v14, 0')
    def exps(t):
        L = []
        for grp in range(4):
            rs = [128 + 16 * t + 4 * grp + i for i in range(4)]
            tb = 96 + 8 * (grp % 2)
            for i, r in enumerate(rs):
                L.append(f'v_lshlrev_b32 v{tb+2*i}, 16, v{r}')
                L.append(f'v_and_b32 v{tb+2*i+1}, s73, v{r}')
            for i in range(8): L.append(f'v_fma_f32 v{tb+i}, v{tb+i}, s72, v7')
            for i in range(8): L.append(f'v_exp_f32 v{tb+i}, v{tb+i}')
            for i, r in enumerate(rs):
                L.append(f'v_cvt_pk_bf16_f32 v{r}, v{tb+2*i}, v{tb+2*i+1}')
                L.append(f'v_add_f32 v13, v13, v{tb+2*i}')
                L.append(f'v_add_f32 v14, v14, v{tb+2*i+1}')
        return L
    for f in exps(0): a(f)
    a('v_lshlrev_b32 v15, 4, v0')
    a('s_lshl_b32 s50, s56, 13')
    a(f's_add_u32 s50, s50, {OBASE}')
    a('v_add_u32 v15, s50, v15')
    for hf in range(2):
        for t in range(8):
            a('s_barrier')
            next_slot(70)
            fl = exps(t + 1) if (hf == 0 and t < 7) else None
            t_step(32, lambda ks, t=t: 128 + 16 * t + 4 * ks, t == 0, fillers=fl)
        if hf == 0:
            a('v_add_f32 v13, v13, v14')
            a('v_mov_b32 v14, v13')
            a('v_permlane32_swap_b32 v13, v14')
            a('v_add_f32 v13, v13, v14')
            a('v_rcp_f32 v13, v13')
        for db in range(4):
            for i in range(16): a(f'v_mul_f32 v{32+16*db+i}, v13, v{32+16*db+i}')
            for i in range(8): a(f'v_cvt_pk_bf16_f32 v{96+8*db+i}, v{32+16*db+2*i}, v{33+16*db+2*i}')
            for u in range(2):
                a(f'ds_write_b128 v15, v[{96+8*db+4*u}:{99+8*db+4*u}] offset:{hf*24576 + (2*db+u)*1024}')
        a('s_waitcnt lgkmcnt(0)')
    a('s_cmp_eq_u32 s65, 0\ns_cbranch_scc1 L_opA')
    a('s_barrier')
    a('s_branch L_fin')

    def op_setup():
        a('s_lshl_b32 s74, s44, 2')
        a('s_cmp_eq_u32 s44, 3\ns_cselect_b32 s74, 11, s74')
        a('s_cmp_lt_u32 s44, 2\ns_cselect_b32 s75, 1, 0')
        a('v_lshrrev_b32 v1, 4, v0')
        a('v_and_b32 v2, 15, v0')
        a('v_lshrrev_b32 v3, 2, v2')
        a('v_lshrrev_b32 v4, 1, v1')
        a('v_lshlrev_b32 v4, 3, v4')
        a('v_add_u32 v4, v4, v3')
        a('v_mul_u32_u24 v5, 896, v4')
        a('v_and_b32 v4, 1, v1')
        a('v_lshlrev_b32 v4, 5, v4')
        a('v_add_u32 v5, v5, v4')
        a('v_and_b32 v4, 1, v0')
        a('v_lshlrev_b32 v4, 4, v4')
        a('v_add_u32 v5, v5, v4')
        a('v_and_b32 v4, 2, v0')
        a('v_lshlrev_b32 v4, 2, v4')
        a('v_add_u32 v5, v5, v4')
        a('v_lshrrev_b32 v3, 1, v3')
        a('v_xor_b32 v4, s74, v3')
        a('v_lshlrev_b32 v4, 6, v4')
        a('v_add_u32 v6, v5, v4')
        a('s_add_u32 s50, s74, 1')
        a('v_xor_b32 v4, s50, v3')
        a('v_lshlrev_b32 v4, 6, v4')
        a('v_add_u32 v7, v5, v4')
        a('v_lshlrev_b32 v15, 4, v0')
    def op_call(task, t):
        k = ('O', task, t)
        a(f's_mov_b32 s76, {T[k]["slot"]*SLOT}')
        a(f's_add_u32 s77, s53, {t & 7}')
        a(f's_mov_b32 s78, {OBASE + (t >> 3) * 24576}')
        a(f's_call_b64 s[60:61], {"L_opstep0" if (task == 0 and t == 0) else "L_opstep"}')
    opmap = {}
    for t in range(16):
        opmap.setdefault(cfg.opA[t], []).append((0, t))
        opmap.setdefault(cfg.opB[t], []).append((1, t))
    a('L_opA:')
    op_setup()
    for s in range(46, LAST + 1):
        a('s_barrier')
        for task, t in opmap.get(s, []): op_call(task, t)
    a('s_branch L_store')

    for first in (True, False):
        a('L_opstep0:' if first else 'L_opstep:')
        a('s_and_b32 s77, s77, 7')
        a('s_lshl_b32 s77, s77, 10')
        a('s_add_u32 s77, s77, s78')
        a('v_add_u32 v10, s77, v15')
        a('v_add_u32 v8, s76, v6')
        a('v_add_u32 v9, s76, v7')
        def rdA(i):
            r = 32 + 4 * i
            a(f'ds_read_b64_tr_b16 v[{r}:{r+1}], v{8+(i%2)} offset:{(i//2)*128}')
            a(f'ds_read_b64_tr_b16 v[{r+2}:{r+3}], v{8+(i%2)} offset:{(i//2)*128+3584}')
        rdA(0)
        for qb in range(3): a(f'ds_read_b128 v[{16+4*qb}:{19+4*qb}], v10 offset:{qb*8192}')
        rdA(1); rdA(2); rdA(3)
        lab = a.label('L_skip')
        for i in range(4):
            if i == 3: a(f's_cmp_eq_u32 s75, 0\ns_cbranch_scc1 {lab}')
            for qb in range(3):
                if i == 0: a(f's_waitcnt lgkmcnt({8-qb})')
                elif qb == 0: a(f's_waitcnt lgkmcnt({6-2*i})')
                d = 64 + 16 * (3 * i + qb)
                c = '0' if first else f'v[{d}:{d+15}]'
                a(f'v_mfma_f32_32x32x16_bf16 v[{d}:{d+15}], v[{32+4*i}:{35+4*i}], v[{16+4*qb}:{19+4*qb}], {c}')
        a(f'{lab}:')
        a('s_waitcnt lgkmcnt(0)')
        a('s_setpc_b64 s[60:61]')

    a('L_roleX:')
    for p in range(7):
        a(f'v_add_u32 v3, {64*p}, v0')
        a('v_subrev_u32 v4, 224, v3')
        a('v_cmp_le_u32 vcc, 224, v3')
        a('v_cndmask_b32 v3, v3, v4, vcc')
        a('v_cmp_le_u32 vcc, 112, v3')
        a('v_cndmask_b32 v3, 0, 4, vcc')
        a('v_xor_b32 v3, v3, v0')
        a(f'v_lshlrev_b32 v{52+p}, 4, v3')
    a(f's_mul_i32 s79, s46, {512*896}')
    vm = VM()
    did_setup = False
    for s in range(-1, LAST + 1):
        if s >= 0: a('s_barrier')
        for k, v in sorted(T.items(), key=lambda kv_: kv_[1]['consume']):
            if v['issue'] != s or k[0] in 'KV': continue
            n = vm.cap(47)
            if n is not None: a(f's_waitcnt vmcnt({n})')
            if k[0] == 'Q' and k[1] == 0:
                wq_tile_soff(0, k[2], 62)
                a(f's_add_u32 s62, s62, {3<<17}')
                a(f's_mov_b32 m0, {v["slot"]*SLOT + 3*4096}')
                issue_wq4(); vm.issue(k, 4)
            elif k[0] == 'Q':
                wq_tile_soff(1, k[2], 62)
                a(f's_mov_b32 m0, {v["slot"]*SLOT}')
                a('s_call_b64 s[60:61], L_issQ'); vm.issue(k, 16)
            elif k[0] == 'O':
                t = k[2]
                a(f's_add_u32 s62, s53, {t & 7}')
                a(f's_mov_b32 s63, {(k[1]*256 + (t >> 3) * 128) * 896}')
                a(f's_mov_b32 m0, {v["slot"]*SLOT}')
                a('s_call_b64 s[60:61], L_issO'); vm.issue(k, 14)
        if s == 20: op_setup()
        for task, t in opmap.get(s, []): op_call(task, t)
        n = vm.wait_for(lambda k: T[k]['consume'] <= s + 1)
        if n is not None: a(f's_waitcnt vmcnt({n})')
        assert len(vm.q) <= 63
    a('s_branch L_store')
    a('L_issQ:')
    for j in range(4):
        issue_wq4()
        if j < 3:
            a(f's_add_u32 s62, s62, {1<<17}')
            a('s_add_u32 m0, m0, 4096')
    a('s_setpc_b64 s[60:61]')
    a('L_issO:')
    a('s_and_b32 s62, s62, 7')
    a(f's_mul_i32 s62, s62, {16*896}')
    a('s_add_u32 s62, s62, s63')
    a('s_add_u32 s62, s62, s79')
    for p in range(14):
        a(f'buffer_load_dwordx4 v{52+p%7}, s[36:39], s62 offen offset:{1024*(p%4)} lds')
        if p % 4 == 3:
            a('s_add_u32 s62, s62, 4096')
            a('s_add_u32 m0, m0, 4096')
    a('s_setpc_b64 s[60:61]')

    a('L_store:')
    a('s_nop 15')
    a('s_lshl_b32 s50, s45, 3')
    a('s_add_u32 s50, s50, s46')
    a(f's_mul_i32 s50, s50, {PART}')
    a(f's_mul_i32 s51, s74, {3*2048}')
    a('s_add_u32 s50, s50, s51')
    for i in range(4):
        if i == 3: a('s_cmp_eq_u32 s75, 0\ns_cbranch_scc1 L_fin')
        for qb in range(3):
            d = 64 + 16 * (3 * i + qb)
            for j in range(8): a(f'v_cvt_pk_bf16_f32 v{d+j}, v{d+2*j}, v{d+2*j+1}')
            a(f'buffer_store_dwordx4 v[{d}:{d+3}], v15, s[40:43], s50 offen')
            a(f'buffer_store_dwordx4 v[{d+4}:{d+7}], v15, s[40:43], s50 offen offset:1024')
            a('s_add_u32 s50, s50, 2048')
    a('s_branch L_fin')

    a('L_loader:')
    a('v_lshrrev_b32 v3, 5, v0')
    a('v_and_b32 v4, 31, v0')
    a('v_lshlrev_b32 v5, 9, v3')
    for p in range(8):
        a(f'v_add_u32 v6, {2*p}, v3')
        a('v_xor_b32 v6, v6, v4')
        a('v_lshlrev_b32 v6, 4, v6')
        a(f'v_add_u32 v{16+p}, v6, v5')
    a('v_lshlrev_b32 v3, 2, v1')
    a('v_xor_b32 v3, v3, v2')
    a('v_lshlrev_b32 v3, 4, v3')
    a('v_lshlrev_b32 v4, 9, v1')
    a('v_add_u32 v24, v3, v4')
    for q in range(1, 4): a(f'v_add_u32 v{24+q}, {1024*q}, v24')
    a('s_lshl_b32 s54, s45, 3')
    a('s_add_u32 s54, s54, s46')
    a('s_lshl_b32 s54, s54, 19')
    vm = VM()
    for s in range(-1, 78):
        if s >= 0: a('s_barrier')
        for k, v in sorted(T.items(), key=lambda kv_: kv_[1]['consume']):
            if v['issue'] != s or k[0] not in 'KV': continue
            n = vm.cap(47)
            if n is not None: a(f's_waitcnt vmcnt({n})')
            t = k[2]
            off = k[1] * 262144 + (t * 16384 if k[0] == 'K' else (t % 8) * 32768 + (t // 8) * 256)
            a(f's_add_u32 s62, s54, {off}')
            a(f's_mov_b32 m0, {v["slot"]*SLOT}')
            a(f's_call_b64 s[60:61], L_iss{k[0]}'); vm.issue(k, 16)
        n = vm.wait_for(lambda k: T[k]['consume'] <= s + 1)
        if n is not None: a(f's_waitcnt vmcnt({n})')
    a('s_branch L_fin')
    a('L_issK:')
    for p in range(16):
        a(f'buffer_load_dwordx4 v{16+p%8}, s[24:27], s62 offen offset:{1024*(p%4)} nt lds')
        if p % 4 == 3 and p < 15:
            a('s_add_u32 s62, s62, 4096')
            a('s_add_u32 m0, m0, 4096')
    a('s_setpc_b64 s[60:61]')
    a('L_issV:')
    for p in range(16):
        a(f'buffer_load_dwordx4 v{24+p%4}, s[28:31], s62 offen offset:{1024*(p%4)} nt lds')
        if p % 4 == 3 and p < 15:
            a('s_add_u32 s62, s62, 8192')
            a('s_add_u32 m0, m0, 4096')
    a('s_setpc_b64 s[60:61]')

    a('L_fin:')
    if cfg.stamps:
        a('s_waitcnt vmcnt(0)')
        a('s_memrealtime s[92:93]')
        a('s_waitcnt lgkmcnt(0)')
        a('v_mov_b32 v8, s90\nv_mov_b32 v9, s91\nv_mov_b32 v10, s92\nv_mov_b32 v11, s93')
        a('s_lshl_b32 s50, s2, 3\ns_add_u32 s50, s50, s44\ns_lshl_b32 s50, s50, 4')
        a(f's_add_u32 s50, s50, {256*PART}')
        a('v_mov_b32 v12, 0')
        a('buffer_store_dwordx4 v[8:11], v12, s[40:43], s50 offen')
    a('L_end:')
    a('s_endpgm')
    main_lines, nn = hazard.fix(a.L)

    r = Asm()
    r('s_cmp_ge_u32 s2, 672')
    r('s_cbranch_scc1 R_end')
    r('s_load_dwordx2 s[4:5], s[0:1], 40')
    r('s_load_dwordx2 s[6:7], s[0:1], 56')
    r('v_lshrrev_b32 v1, 6, v0')
    r('v_readfirstlane_b32 s8, v1')
    r('v_and_b32 v2, 63, v0')
    r(f's_mov_b32 s9, {(1 << 32) // 21 + 1}')
    r('s_mul_hi_u32 s10, s2, s9')
    r('s_mul_i32 s11, s10, 21')
    r('s_sub_u32 s11, s2, s11')
    r('s_lshl_b32 s11, s11, 2')
    r('s_add_u32 s11, s11, s8')
    r(f's_mul_i32 s12, s10, {8*PART}')
    r('s_lshl_b32 s13, s11, 10')
    r('s_add_u32 s12, s12, s13')
    r('v_lshlrev_b32 v3, 4, v2')
    r('s_waitcnt lgkmcnt(0)')
    r(f's_mov_b32 s16, s6\ns_mov_b32 s17, s7\ns_mov_b32 s18, {256*PART}\ns_mov_b32 s19, 0x20000')
    r(f's_mov_b32 s20, s4\ns_mov_b32 s21, s5\ns_mov_b32 s22, {32*96*896}\ns_mov_b32 s23, 0x20000')
    for j in range(8):
        r(f'buffer_load_dwordx4 v[{8+4*j}:{11+4*j}], v3, s[16:19], s12 offen')
        if j < 7: r(f's_add_u32 s12, s12, {PART}')
    r('s_lshr_b32 s13, s11, 1')
    r('s_and_b32 s14, s11, 1')
    r(f's_mul_i32 s15, s13, 43691')
    r('s_lshr_b32 s15, s15, 17')
    r('s_mul_i32 s24, s15, 3')
    r('s_sub_u32 s24, s13, s24')
    r('s_mul_i32 s25, s10, 96')
    r('s_lshl_b32 s24, s24, 5')
    r('s_add_u32 s25, s25, s24')
    r('s_mul_i32 s25, s25, 896')
    r('s_lshl_b32 s15, s15, 6')
    r('s_lshl_b32 s14, s14, 5')
    r('s_add_u32 s25, s25, s15')
    r('s_add_u32 s25, s25, s14')
    r('v_and_b32 v4, 31, v2')
    r('v_mul_u32_u24 v4, 896, v4')
    r('v_lshrrev_b32 v5, 5, v2')
    r('v_lshlrev_b32 v5, 4, v5')
    r('v_add_u32 v4, v4, v5')
    r('s_mov_b32 s26, 0xffff0000')
    for j in range(8):
        r(f's_waitcnt vmcnt({7-j})')
        for i in range(4):
            src = 8 + 4 * j + i
            if j == 0:
                r(f'v_lshlrev_b32 v{40+2*i}, 16, v{src}')
                r(f'v_and_b32 v{41+2*i}, s26, v{src}')
            else:
                r(f'v_lshlrev_b32 v6, 16, v{src}')
                r(f'v_and_b32 v7, s26, v{src}')
                r(f'v_add_f32 v{40+2*i}, v{40+2*i}, v6')
                r(f'v_add_f32 v{41+2*i}, v{41+2*i}, v7')
    for i in range(4): r(f'v_cvt_pk_bf16_f32 v{48+i}, v{40+2*i}, v{41+2*i}')
    r('buffer_store_dwordx4 v[48:51], v4, s[20:23], s25 offen')
    r('R_end:')
    r('s_endpgm')
    red_lines, _ = hazard.fix(r.L)

    K1 = 'mha_main_kernel'; K2 = 'mha_reduce_kernel'
    txt = header([(K1, 256, 512, 163840), (K2, 672, 256, 0)])
    txt += kstart(K1) + '\n'.join(main_lines) + '\n' + kstart(K2) + '\n'.join(red_lines) + '\n'
    txt += RODATA + kdesc(K1, 256, 96) + '.p2align 6\n' + kdesc(K2, 52, 32)
    return txt, T

if __name__ == '__main__':
    cfg = Cfg()
    out = sys.argv[1] if len(sys.argv) > 1 else 'main.s'
    for kv in sys.argv[2:]:
        k, v = kv.split('=')
        setattr(cfg, k, eval(v))
    txt, T = gen(cfg)
    open(out, 'w').write(txt)
    if '-v' in sys.argv[0:1]: pass
```

```python
import sys
from asmlib import *
import hazard

SLOT = 16384
OBASE = 7 * SLOT
PART = 86016
C_EXP = 0.09016844005556021

import struct
def f32(x): return '0x%08x' % struct.unpack('<I', struct.pack('<f', x))[0]

class Cfg:
    LW = 3
    head_k = [-1, -1, 2, 4, 6, 8, 10]
    opA = list(range(46, 62))
    opB = list(range(70, 86))
    xnt = True
    stamps = False
    steps = False

def schedule(cfg):
    kv = [('K', 0, t) for t in range(16)] + [('V', 0, t) for t in range(16)] + [('K', 1, t) for t in range(16)] + [('V', 1, t) for t in range(16)]
    w = [('Q', 0, i) for i in range(14)] + [('Q', 1, i) for i in range(14)] + [('O', 0, t) for t in range(16)] + [('O', 1, t) for t in range(16)]
    T = {}
    for i, k in enumerate(kv): T[k] = dict(consume=14 + i, earliest=cfg.head_k[i] if i < len(cfg.head_k) else -1)
    for i in range(14):
        T[('Q', 0, i)] = dict(consume=i, earliest=-1)
        T[('Q', 1, i)] = dict(consume=14 + 2 * i, earliest=-1)
    for t in range(16):
        T[('O', 0, t)] = dict(consume=cfg.opA[t], earliest=-1)
        T[('O', 1, t)] = dict(consume=cfg.opB[t], earliest=-1)
    last = max(v['consume'] for v in T.values())
    limit = {7: 36, 8: 36, 9: 44}
    busy = {}
    ikv = iw = 0
    for s in range(-1, last + 1):
        def free(cons, prefer_hi):
            c = [sl for sl in range(10) if busy.get(sl, -10) < s and cons <= limit.get(sl, 10**9)]
            if not c: return None
            return max(c) if prefer_hi else min(c)
        n_w = 0
        while iw < len(w):
            k = w[iw]
            res = sum(1 for kk in w[:iw] if T[kk]['consume'] >= s)
            kv_done = ikv >= len(kv)
            lw = cfg.LW if not kv_done else 7
            if res >= lw or (T[k]['consume'] - s > (2 * cfg.LW if not kv_done else 100)): break
            if n_w >= (3 if s == -1 else 2): break
            sl = free(T[k]['consume'], False)
            if sl is None: break
            T[k]['issue'] = s; T[k]['slot'] = sl; busy[sl] = T[k]['consume']; iw += 1; n_w += 1
        n_kv = 0
        while ikv < len(kv):
            k = kv[ikv]
            if T[k]['earliest'] > s: break
            if n_kv >= (2 if s == -1 else 1): break
            held = sum(1 for kk in kv[:ikv] if T[kk]['consume'] >= s and T[kk]['slot'] < 7)
            sl = free(T[k]['consume'], True)
            if sl is None: break
            if sl < 7 and held >= 7 - cfg.LW: break
            T[k]['issue'] = s; T[k]['slot'] = sl; busy[sl] = T[k]['consume']; ikv += 1; n_kv += 1
    for k, v in T.items():
        assert 'issue' in v and v['issue'] < v['consume'], (k, v)
    return T, last

def nibbles(slots):
    v = 0
    for i, s in enumerate(slots): v |= s << (4 * i)
    return v & 0xffffffff, v >> 32

class VM:
    def __init__(self): self.q = []
    def issue(self, key, n): self.q += [key] * n
    def wait_for(self, pred):
        idx = [i for i, k in enumerate(self.q) if pred(k)]
        if not idx: return None
        n = len(self.q) - 1 - idx[-1]
        self.q = self.q[idx[-1] + 1:]
        return n
    def cap(self, maxn):
        if len(self.q) > maxn:
            self.q = self.q[len(self.q) - maxn:]
            return maxn
        return None

def reduce_kernel():
    r = Asm()
    r('s_cmp_ge_u32 s2, 672')
    r('s_cbranch_scc1 R_end')
    r('s_load_dwordx2 s[4:5], s[0:1], 40')
    r('s_load_dwordx2 s[6:7], s[0:1], 56')
    r('v_lshrrev_b32 v1, 6, v0')
    r('v_readfirstlane_b32 s8, v1')
    r('v_and_b32 v2, 63, v0')
    r(f's_mov_b32 s9, {(1 << 32) // 21 + 1}')
    r('s_mul_hi_u32 s10, s2, s9')
    r('s_mul_i32 s11, s10, 21')
    r('s_sub_u32 s11, s2, s11')
    r('s_lshl_b32 s11, s11, 2')
    r('s_add_u32 s11, s11, s8')
    r(f's_mul_i32 s12, s10, {8*PART}')
    r('s_lshl_b32 s13, s11, 10')
    r('s_add_u32 s12, s12, s13')
    r('v_lshlrev_b32 v3, 4, v2')
    r('s_waitcnt lgkmcnt(0)')
    r(f's_mov_b32 s16, s6\ns_mov_b32 s17, s7\ns_mov_b32 s18, {256*PART}\ns_mov_b32 s19, 0x20000')
    r(f's_mov_b32 s20, s4\ns_mov_b32 s21, s5\ns_mov_b32 s22, {32*96*896}\ns_mov_b32 s23, 0x20000')
    for j in range(8):
        r(f'buffer_load_dwordx4 v[{8+4*j}:{11+4*j}], v3, s[16:19], s12 offen')
        if j < 7: r(f's_add_u32 s12, s12, {PART}')
    r('s_lshr_b32 s13, s11, 1')
    r('s_and_b32 s14, s11, 1')
    r(f's_mul_i32 s15, s13, 43691')
    r('s_lshr_b32 s15, s15, 17')
    r('s_mul_i32 s24, s15, 3')
    r('s_sub_u32 s24, s13, s24')
    r('s_mul_i32 s25, s10, 96')
    r('s_lshl_b32 s24, s24, 5')
    r('s_add_u32 s25, s25, s24')
    r('s_mul_i32 s25, s25, 896')
    r('s_lshl_b32 s15, s15, 6')
    r('s_lshl_b32 s14, s14, 5')
    r('s_add_u32 s25, s25, s15')
    r('s_add_u32 s25, s25, s14')
    r('v_and_b32 v4, 31, v2')
    r('v_mul_u32_u24 v4, 896, v4')
    r('v_lshrrev_b32 v5, 5, v2')
    r('v_lshlrev_b32 v5, 4, v5')
    r('v_add_u32 v4, v4, v5')
    r('s_mov_b32 s26, 0xffff0000')
    for j in range(8):
        r(f's_waitcnt vmcnt({7-j})')
        for i in range(4):
            src = 8 + 4 * j + i
            if j == 0:
                r(f'v_lshlrev_b32 v{40+2*i}, 16, v{src}')
                r(f'v_and_b32 v{41+2*i}, s26, v{src}')
            else:
                r(f'v_lshlrev_b32 v6, 16, v{src}')
                r(f'v_and_b32 v7, s26, v{src}')
                r(f'v_add_f32 v{40+2*i}, v{40+2*i}, v6')
                r(f'v_add_f32 v{41+2*i}, v{41+2*i}, v7')
    for i in range(4): r(f'v_cvt_pk_bf16_f32 v{48+i}, v{40+2*i}, v{41+2*i}')
    r('buffer_store_dwordx4 v[48:51], v4, s[20:23], s25 offen')
    r('R_end:')
    r('s_endpgm')
    red_lines, _ = hazard.fix(r.L)

    return red_lines

def gen(cfg):
    T, LAST = schedule(cfg)
    a = Asm()
    def stamp(i):
        if not cfg.steps: return
        a('s_memtime s[94:95]')
        a('s_waitcnt lgkmcnt(0)')
        a(f'v_writelane_b32 v{1 + i // 64}, s94, {i % 64}')
    a('s_cmp_ge_u32 s2, 256')
    a('s_cbranch_scc1 L_end')
    a('s_load_dwordx16 s[4:19], s[0:1], 0')
    if cfg.stamps: a('s_memrealtime s[90:91]')
    if cfg.steps: a('s_memtime s[88:89]')
    a('v_lshrrev_b32 v1, 6, v0')
    a('v_readfirstlane_b32 s44, v1')
    a('v_and_b32 v0, 63, v0')
    a('s_and_b32 s48, s2, 7')
    a('s_lshr_b32 s49, s2, 3')
    a('s_and_b32 s47, s49, 15')
    a('s_and_b32 s50, s48, 1')
    a('s_lshl_b32 s50, s50, 4')
    a('s_add_u32 s45, s50, s47')
    a('s_lshr_b32 s50, s48, 1')
    a('s_lshl_b32 s50, s50, 1')
    a('s_lshr_b32 s51, s49, 4')
    a('s_add_u32 s46, s50, s51')
    a('s_mov_b32 s52, s47')
    a('s_cmp_ge_u32 s52, 7\ns_cselect_b32 s50, 7, 0\ns_sub_u32 s52, s52, s50')
    a('s_cmp_ge_u32 s52, 7\ns_cselect_b32 s50, 7, 0\ns_sub_u32 s52, s52, s50')
    a('s_and_b32 s53, s47, 7')
    a('s_waitcnt lgkmcnt(0)')
    def srd(d, src, nbytes):
        a(f's_mov_b32 s{d}, s{src}\ns_mov_b32 s{d+1}, s{src+1}\ns_mov_b32 s{d+2}, {nbytes}\ns_mov_b32 s{d+3}, 0x20000')
    srd(20, 4, 32 * 96 * 896); srd(24, 6, 1 << 27); srd(28, 8, 1 << 27)
    srd(32, 10, 448 * 8192); srd(36, 12, 4096 * 896); srd(40, 18, 256 * PART + (1 << 20))
    a('v_lshrrev_b32 v1, 4, v0')
    a('v_and_b32 v2, 15, v0')
    a('s_cmp_eq_u32 s44, 7\ns_cbranch_scc1 L_loader')
    a('s_cmp_lt_u32 s44, 3\ns_cbranch_scc1 L_roleA')
    a('v_lshlrev_b32 v3, 2, v1')
    a('v_xor_b32 v3, v3, v2')
    a('v_lshlrev_b32 v3, 4, v3')
    a('v_lshlrev_b32 v4, 13, v1')
    a('v_add_u32 v48, v3, v4')
    for q in range(1, 4): a(f'v_add_u32 v{48+q}, {q*(4*8192-1024)}, v48')
    a('s_lshl_b32 s55, s46, 10')
    a('s_cmp_eq_u32 s44, 3\ns_cbranch_scc1 L_roleX')
    a('s_branch L_roleB')

    def wq_tile_soff(task, i, dst):
        t = i % 7; ps = i // 7
        a(f's_add_u32 s{dst}, s52, {t}')
        a(f's_cmp_ge_u32 s{dst}, 7')
        a(f's_cselect_b32 s50, 7, 0')
        a(f's_sub_u32 s{dst}, s{dst}, s50')
        a(f's_lshl_b32 s{dst}, s{dst}, 19')
        a(f's_add_u32 s{dst}, s{dst}, s55')
        if task * 512 + ps * 256: a(f's_add_u32 s{dst}, s{dst}, {task*512 + ps*256}')

    def x_loads(vm=None):
        a('v_and_b32 v3, 31, v0')
        a('v_mul_u32_u24 v3, 896, v3')
        a('v_lshrrev_b32 v4, 5, v0')
        a('v_lshlrev_b32 v4, 4, v4')
        a('v_add_u32 v3, v3, v4')
        a('s_mul_i32 s57, s45, 96')
        a('s_lshl_b32 s58, s56, 5')
        a('s_add_u32 s57, s57, s58')
        a('s_mul_i32 s57, s57, 896')
        a('s_mov_b32 s58, s52')
        for t in range(7):
            a('s_lshl_b32 s59, s58, 7')
            a('s_add_u32 s59, s59, s57')
            for ks in range(4):
                r = 144 + 16 * t + 4 * ks
                a(f'buffer_load_dwordx4 v[{r}:{r+3}], v3, s[20:23], s59 offen offset:{32*ks}' + (' nt' if cfg.xnt else ''))
            if t < 6:
                a('s_add_u32 s58, s58, 1')
                a('s_cmp_eq_u32 s58, 7')
                a('s_cselect_b32 s58, 0, s58')

    def set_tbl(dst, slots):
        lo, hi = nibbles(slots)
        a(f's_mov_b32 s{dst}, 0x{lo:x}\ns_mov_b32 s{dst+1}, 0x{hi:x}')

    def issue_wq4():
        for q in range(4):
            a(f'buffer_load_dwordx4 v{48+q}, s[32:35], s62 offen offset:{1024*q} lds')

    a('L_roleB:')
    a('s_sub_u32 s56, s44, 4')
    a('s_lshl_b32 s63, s56, 17')
    a('s_lshl_b32 s64, s56, 12')
    vm = VM()
    for s in range(-1, 14):
        if s >= 0: a('s_barrier')
        for i in range(14):
            k = ('Q', 0, i)
            if T[k]['issue'] == s:
                wq_tile_soff(0, i, 62)
                a('s_add_u32 s62, s62, s63')
                a(f's_add_u32 m0, s64, {T[k]["slot"]*SLOT}')
                issue_wq4(); vm.issue(k, 4)
        n = vm.wait_for(lambda k: T[k]['consume'] <= s + 1)
        if n is not None: a(f's_waitcnt vmcnt({n})')
        if s == 12: x_loads()
    set_tbl(66, [T[('Q', 1, i)]['slot'] for i in range(14)])
    set_tbl(68, [T[('K', 1, i)]['slot'] for i in range(16)])
    set_tbl(70, [T[('V', 1, i)]['slot'] for i in range(16)])
    a('s_mov_b32 s65, 1')
    a('s_branch L_qp')
    a('L_roleA:')
    a('s_mov_b32 s56, s44')
    x_loads()
    set_tbl(66, [T[('Q', 0, i)]['slot'] for i in range(14)])
    set_tbl(68, [T[('K', 0, i)]['slot'] for i in range(16)])
    set_tbl(70, [T[('V', 0, i)]['slot'] for i in range(16)])
    a('s_mov_b32 s65, 0')
    a('L_qp:')
    a('v_lshrrev_b32 v3, 2, v2')
    a('v_lshrrev_b32 v4, 1, v1')
    a('v_lshlrev_b32 v4, 3, v4')
    a('v_add_u32 v4, v4, v3')
    a('v_lshlrev_b32 v5, 8, v4')
    a('v_lshlrev_b32 v3, 6, v3')
    a('v_add_u32 v5, v5, v3')
    a('v_and_b32 v3, 1, v1')
    a('v_lshlrev_b32 v3, 5, v3')
    a('v_add_u32 v5, v5, v3')
    a('v_and_b32 v3, 1, v0')
    a('v_lshlrev_b32 v3, 4, v3')
    a('v_add_u32 v5, v5, v3')
    a('v_and_b32 v3, 2, v0')
    a('v_lshlrev_b32 v3, 2, v3')
    a('v_add_u32 v5, v5, v3')
    a('v_and_b32 v3, 0x13, v0')
    a('v_and_b32 v4, 4, v0')
    a('v_lshlrev_b32 v4, 1, v4')
    a('v_or_b32 v3, v3, v4')
    a('v_and_b32 v4, 8, v0')
    a('v_lshrrev_b32 v4, 1, v4')
    a('v_or_b32 v3, v3, v4')
    a('v_lshlrev_b32 v6, 9, v3')
    a('v_and_b32 v3, 15, v3')
    a('v_lshrrev_b32 v4, 5, v0')
    a('v_xor_b32 v3, v3, v4')
    a('v_lshlrev_b32 v3, 4, v3')
    a('v_add_u32 v6, v6, v3')

    def next_slot(tbl):
        a(f's_and_b32 s50, s{tbl}, 15')
        a(f's_lshr_b64 s[{tbl}:{tbl+1}], s[{tbl}:{tbl+1}], 4')
        a('s_lshl_b32 s50, s50, 14')

    FB = 16
    def t_step(acc0, bfrag, first, fillers=None, pre=None):
        a('v_add_u32 v8, s50, v5')
        for db in range(1, 4): a(f'v_xor_b32 v{8+db}, {db<<6}, v8')
        seq = [(ks, db) for ks in range(4) for db in range(4)]
        def rd(i):
            ks, db = seq[i]; r = FB + 4 * (i % 4)
            a(f'ds_read_b64_tr_b16 v[{r}:{r+1}], v{8+db} offset:{ks*4096}')
            a(f'ds_read_b64_tr_b16 v[{r+2}:{r+3}], v{8+db} offset:{ks*4096+1024}')
        for i in range(4): rd(i)
        if pre: pre()
        fl = list(fillers) if fillers else []
        per = (len(fl) + 15) // 16
        for i in range(16):
            ks, db = seq[i]; r = FB + 4 * (i % 4)
            a(f's_waitcnt lgkmcnt({2*min(3, 15-i)})')
            d = acc0 + 16 * db; b = bfrag(ks)
            c = '0' if (first and ks == 0) else f'v[{d}:{d+15}]'
            a(f'v_mfma_f32_32x32x16_bf16 v[{d}:{d+15}], v[{r}:{r+3}], v[{b}:{b+3}], {c}')
            if i + 4 < 16: rd(i + 4)
            for f in fl[i * per:(i + 1) * per]: a(f)

    for ps in range(2):
        for t in range(7):
            a('s_barrier')
            next_slot(66)
            pre = (lambda t=t: a(f's_waitcnt vmcnt({28-4*(t+1)})')) if ps == 0 else None
            t_step(64, lambda ks, t=t: 144 + 16 * t + 4 * ks, t == 0, pre=pre)
            if t == 6:
                for i in range(32):
                    a(f'v_cvt_pk_bf16_f32 v{32+32*ps+i}, v{64+2*i}, v{65+2*i}')
            stamp(7 * ps + t)
            lab = a.label('L_qb')
            a(f's_cmp_eq_u32 s65, 0\ns_cbranch_scc1 {lab}')
            a('s_barrier')
            if ps == 1 and t == 6:
                a('s_barrier\ns_barrier\ns_barrier\ns_barrier')
            a(f'{lab}:')
    def post(t):
        acc = 96 + 16 * (t % 2)
        L = []
        for i in range(8):
            L.append(f'v_cvt_pk_bf16_f32 v{128+8*t+i}, v{acc+2*i}, v{acc+2*i+1}')
            if t == 0 and i == 0: L.append(f'v_max_f32 v7, v{acc}, v{acc+1}')
            else: L.append(f'v_max3_f32 v7, v7, v{acc+2*i}, v{acc+2*i+1}')
        return L
    for t in range(16):
        a('s_barrier')
        next_slot(68)
        a('v_add_u32 v8, s50, v6')
        seq = [e + 8 * u for e in range(8) for u in range(2)]
        def rd(i):
            ks = seq[i]; r = FB + 4 * (i % 4); e = ks & 7
            ar = 8 if e == 0 else 9 + (e % 2)
            if ks < 8 and e: a(f'v_xor_b32 v{ar}, {e<<5}, v8')
            a(f'ds_read_b128 v[{r}:{r+3}], v{ar} offset:{(ks>>3)*256}')
        for i in range(4): rd(i)
        fl = post(t - 1) if t else []
        acc = 96 + 16 * (t % 2)
        for i in range(16):
            ks = seq[i]; r = FB + 4 * (i % 4)
            a(f's_waitcnt lgkmcnt({min(3, 15-i)})')
            c = '0' if i == 0 else f'v[{acc}:{acc+15}]'
            a(f'v_mfma_f32_32x32x16_bf16 v[{acc}:{acc+15}], v[{r}:{r+3}], v[{32+4*ks}:{35+4*ks}], {c}')
            if i + 4 < 16: rd(i + 4)
            if i >= 2 and i < 10:
                for f in fl[2 * (i - 2):2 * (i - 1)]: a(f)
        if t < 15: stamp(14 + t)
    for f in post(15): a(f)
    a('v_mov_b32 v12, v7')
    a('v_permlane32_swap_b32 v7, v12')
    a('v_max_f32 v7, v7, v12')
    a(f's_mov_b32 s72, {f32(C_EXP)}')
    a('s_mov_b32 s73, 0xffff0000')
    a('v_mul_f32 v7, s72, v7')
    a('v_sub_f32 v7, 0, v7')
    a('v_mov_b32 v13, 0')
    a('v_mov_b32 v14, 0')
    def exps(t):
        L = []
        for grp in range(4):
            rs = [128 + 16 * t + 4 * grp + i for i in range(4)]
            tb = 96 + 8 * (grp % 2)
            for i, r in enumerate(rs):
                L.append(f'v_lshlrev_b32 v{tb+2*i}, 16, v{r}')
                L.append(f'v_and_b32 v{tb+2*i+1}, s73, v{r}')
            for i in range(8): L.append(f'v_fma_f32 v{tb+i}, v{tb+i}, s72, v7')
            for i in range(8): L.append(f'v_exp_f32 v{tb+i}, v{tb+i}')
            for i, r in enumerate(rs):
                L.append(f'v_cvt_pk_bf16_f32 v{r}, v{tb+2*i}, v{tb+2*i+1}')
                L.append(f'v_add_f32 v13, v13, v{tb+2*i}')
                L.append(f'v_add_f32 v14, v14, v{tb+2*i+1}')
        return L
    for f in exps(0): a(f)
    a('v_lshlrev_b32 v15, 4, v0')
    a('s_lshl_b32 s50, s56, 13')
    a(f's_add_u32 s50, s50, {OBASE}')
    a('v_add_u32 v15, s50, v15')
    stamp(29)
    for hf in range(2):
        for t in range(8):
            a('s_barrier')
            next_slot(70)
            fl = exps(t + 1) if (hf == 0 and t < 7) else None
            t_step(32, lambda ks, t=t: 128 + 16 * t + 4 * ks, t == 0, fillers=fl)
            if t < 7: stamp(30 + 8 * hf + t)
        if hf == 0:
            a('v_add_f32 v13, v13, v14')
            a('v_mov_b32 v14, v13')
            a('v_permlane32_swap_b32 v13, v14')
            a('v_add_f32 v13, v13, v14')
            a('v_rcp_f32 v13, v13')
        for db in range(4):
            for i in range(16): a(f'v_mul_f32 v{32+16*db+i}, v13, v{32+16*db+i}')
            for i in range(8): a(f'v_cvt_pk_bf16_f32 v{96+8*db+i}, v{32+16*db+2*i}, v{33+16*db+2*i}')
            for u in range(2):
                a(f'ds_write_b128 v15, v[{96+8*db+4*u}:{99+8*db+4*u}] offset:{hf*24576 + (2*db+u)*1024}')
        a('s_waitcnt lgkmcnt(0)')
        stamp(37 + 8 * hf)
    a('s_cmp_eq_u32 s65, 0\ns_cbranch_scc1 L_opA')
    a('s_barrier')
    a('s_branch L_fin')

    def op_setup():
        a('s_lshl_b32 s74, s44, 2')
        a('s_cmp_eq_u32 s44, 3\ns_cselect_b32 s74, 11, s74')
        a('s_cmp_lt_u32 s44, 2\ns_cselect_b32 s75, 1, 0')
        a('v_lshrrev_b32 v21, 4, v0')
        a('v_and_b32 v22, 15, v0')
        a('v_lshrrev_b32 v23, 2, v22')
        a('v_lshrrev_b32 v24, 1, v21')
        a('v_lshlrev_b32 v24, 3, v24')
        a('v_add_u32 v24, v24, v23')
        a('v_mul_u32_u24 v25, 896, v24')
        a('v_and_b32 v24, 1, v21')
        a('v_lshlrev_b32 v24, 5, v24')
        a('v_add_u32 v25, v25, v24')
        a('v_and_b32 v24, 1, v0')
        a('v_lshlrev_b32 v24, 4, v24')
        a('v_add_u32 v25, v25, v24')
        a('v_and_b32 v24, 2, v0')
        a('v_lshlrev_b32 v24, 2, v24')
        a('v_add_u32 v25, v25, v24')
        a('v_lshrrev_b32 v23, 1, v23')
        a('v_xor_b32 v24, s74, v23')
        a('v_lshlrev_b32 v24, 6, v24')
        a('v_add_u32 v6, v25, v24')
        a('s_add_u32 s50, s74, 1')
        a('v_xor_b32 v24, s50, v23')
        a('v_lshlrev_b32 v24, 6, v24')
        a('v_add_u32 v7, v25, v24')
        a('v_lshlrev_b32 v15, 4, v0')
    def op_call(task, t):
        k = ('O', task, t)
        a(f's_mov_b32 s76, {T[k]["slot"]*SLOT}')
        a(f's_add_u32 s77, s53, {t & 7}')
        a(f's_mov_b32 s78, {OBASE + (t >> 3) * 24576}')
        a(f's_call_b64 s[60:61], {"L_opstep0" if (task == 0 and t == 0) else "L_opstep"}')
    opmap = {}
    for t in range(16):
        opmap.setdefault(cfg.opA[t], []).append((0, t))
        opmap.setdefault(cfg.opB[t], []).append((1, t))
    a('L_opA:')
    op_setup()
    for s in range(46, LAST + 1):
        a('s_barrier')
        for task, t in opmap.get(s, []): op_call(task, t)
        stamp(s)
    a('s_branch L_store')

    for first in (True, False):
        a('L_opstep0:' if first else 'L_opstep:')
        a('s_and_b32 s77, s77, 7')
        a('s_lshl_b32 s77, s77, 10')
        a('s_add_u32 s77, s77, s78')
        a('v_add_u32 v10, s77, v15')
        a('v_add_u32 v8, s76, v6')
        a('v_add_u32 v9, s76, v7')
        def rdA(i):
            r = 32 + 4 * i
            a(f'ds_read_b64_tr_b16 v[{r}:{r+1}], v{8+(i%2)} offset:{(i//2)*128}')
            a(f'ds_read_b64_tr_b16 v[{r+2}:{r+3}], v{8+(i%2)} offset:{(i//2)*128+3584}')
        rdA(0)
        for qb in range(3): a(f'ds_read_b128 v[{16+4*qb}:{19+4*qb}], v10 offset:{qb*8192}')
        rdA(1); rdA(2); rdA(3)
        lab = a.label('L_skip')
        for i in range(4):
            if i == 3: a(f's_cmp_eq_u32 s75, 0\ns_cbranch_scc1 {lab}')
            for qb in range(3):
                if i == 0: a(f's_waitcnt lgkmcnt({8-qb})')
                elif qb == 0: a(f's_waitcnt lgkmcnt({6-2*i})')
                d = 64 + 16 * (3 * i + qb)
                c = '0' if first else f'v[{d}:{d+15}]'
                a(f'v_mfma_f32_32x32x16_bf16 v[{d}:{d+15}], v[{32+4*i}:{35+4*i}], v[{16+4*qb}:{19+4*qb}], {c}')
        a(f'{lab}:')
        a('s_waitcnt lgkmcnt(0)')
        a('s_setpc_b64 s[60:61]')

    a('L_roleX:')
    for p in range(7):
        a(f'v_add_u32 v3, {64*p}, v0')
        a('v_subrev_u32 v4, 224, v3')
        a('v_cmp_le_u32 vcc, 224, v3')
        a('v_cndmask_b32 v3, v3, v4, vcc')
        a('v_cmp_le_u32 vcc, 112, v3')
        a('v_cndmask_b32 v3, 0, 4, vcc')
        a('v_xor_b32 v3, v3, v0')
        a(f'v_lshlrev_b32 v{52+p}, 4, v3')
    a(f's_mul_i32 s79, s46, {512*896}')
    vm = VM()
    did_setup = False
    for s in range(-1, LAST + 1):
        if s >= 0: a('s_barrier')
        for k, v in sorted(T.items(), key=lambda kv_: kv_[1]['consume']):
            if v['issue'] != s or k[0] in 'KV': continue
            n = vm.cap(47)
            if n is not None: a(f's_waitcnt vmcnt({n})')
            if k[0] == 'Q' and k[1] == 0:
                wq_tile_soff(0, k[2], 62)
                a(f's_add_u32 s62, s62, {3<<17}')
                a(f's_mov_b32 m0, {v["slot"]*SLOT + 3*4096}')
                issue_wq4(); vm.issue(k, 4)
            elif k[0] == 'Q':
                wq_tile_soff(1, k[2], 62)
                a(f's_mov_b32 m0, {v["slot"]*SLOT}')
                a('s_call_b64 s[60:61], L_issQ'); vm.issue(k, 16)
            elif k[0] == 'O':
                t = k[2]
                a(f's_add_u32 s62, s53, {t & 7}')
                a(f's_mov_b32 s63, {(k[1]*256 + (t >> 3) * 128) * 896}')
                a(f's_mov_b32 m0, {v["slot"]*SLOT}')
                a('s_call_b64 s[60:61], L_issO'); vm.issue(k, 14)
        if s == 20: op_setup()
        for task, t in opmap.get(s, []): op_call(task, t)
        n = vm.wait_for(lambda k: T[k]['consume'] <= s + 1)
        if n is not None: a(f's_waitcnt vmcnt({n})')
        assert len(vm.q) <= 63
        stamp(s if s >= 0 else 126)
    a('s_branch L_store')
    a('L_issQ:')
    for j in range(4):
        issue_wq4()
        if j < 3:
            a(f's_add_u32 s62, s62, {1<<17}')
            a('s_add_u32 m0, m0, 4096')
    a('s_setpc_b64 s[60:61]')
    a('L_issO:')
    a('s_and_b32 s62, s62, 7')
    a(f's_mul_i32 s62, s62, {16*896}')
    a('s_add_u32 s62, s62, s63')
    a('s_add_u32 s62, s62, s79')
    for p in range(14):
        a(f'buffer_load_dwordx4 v{52+p%7}, s[36:39], s62 offen offset:{1024*(p%4)} lds')
        if p % 4 == 3:
            a('s_add_u32 s62, s62, 4096')
            a('s_add_u32 m0, m0, 4096')
    a('s_setpc_b64 s[60:61]')

    a('L_store:')
    a('s_nop 15')
    a('s_lshl_b32 s50, s45, 3')
    a('s_add_u32 s50, s50, s46')
    a(f's_mul_i32 s50, s50, {PART}')
    a(f's_mul_i32 s51, s74, {3*2048}')
    a('s_add_u32 s50, s50, s51')
    for i in range(4):
        if i == 3: a('s_cmp_eq_u32 s75, 0\ns_cbranch_scc1 L_fin')
        for qb in range(3):
            d = 64 + 16 * (3 * i + qb)
            for j in range(8): a(f'v_cvt_pk_bf16_f32 v{d+j}, v{d+2*j}, v{d+2*j+1}')
            a(f'buffer_store_dwordx4 v[{d}:{d+3}], v15, s[40:43], s50 offen')
            a(f'buffer_store_dwordx4 v[{d+4}:{d+7}], v15, s[40:43], s50 offen offset:1024')
            a('s_add_u32 s50, s50, 2048')
    a('s_branch L_fin')

    a('L_loader:')
    a('v_lshrrev_b32 v3, 5, v0')
    a('v_and_b32 v4, 31, v0')
    a('v_lshlrev_b32 v5, 9, v3')
    for p in range(8):
        a(f'v_add_u32 v6, {2*p}, v3')
        a('v_xor_b32 v6, v6, v4')
        a('v_lshlrev_b32 v6, 4, v6')
        a(f'v_add_u32 v{16+p}, v6, v5')
    a('v_lshlrev_b32 v3, 2, v1')
    a('v_xor_b32 v3, v3, v2')
    a('v_lshlrev_b32 v3, 4, v3')
    a('v_lshlrev_b32 v4, 9, v1')
    a('v_add_u32 v24, v3, v4')
    for q in range(1, 4): a(f'v_add_u32 v{24+q}, {1024*q}, v24')
    a('s_lshl_b32 s54, s45, 3')
    a('s_add_u32 s54, s54, s46')
    a('s_lshl_b32 s54, s54, 19')
    vm = VM()
    for s in range(-1, 78):
        if s >= 0: a('s_barrier')
        for k, v in sorted(T.items(), key=lambda kv_: kv_[1]['consume']):
            if v['issue'] != s or k[0] not in 'KV': continue
            n = vm.cap(47)
            if n is not None: a(f's_waitcnt vmcnt({n})')
            t = k[2]
            off = k[1] * 262144 + (t * 16384 if k[0] == 'K' else (t % 8) * 32768 + (t // 8) * 256)
            a(f's_add_u32 s62, s54, {off}')
            a(f's_mov_b32 m0, {v["slot"]*SLOT}')
            a(f's_call_b64 s[60:61], L_iss{k[0]}'); vm.issue(k, 16)
        n = vm.wait_for(lambda k: T[k]['consume'] <= s + 1)
        if n is not None: a(f's_waitcnt vmcnt({n})')
        stamp(s if s >= 0 else 126)
    a('s_branch L_fin')
    a('L_issK:')
    for p in range(16):
        a(f'buffer_load_dwordx4 v{16+p%8}, s[24:27], s62 offen offset:{1024*(p%4)} nt lds')
        if p % 4 == 3 and p < 15:
            a('s_add_u32 s62, s62, 4096')
            a('s_add_u32 m0, m0, 4096')
    a('s_setpc_b64 s[60:61]')
    a('L_issV:')
    for p in range(16):
        a(f'buffer_load_dwordx4 v{24+p%4}, s[28:31], s62 offen offset:{1024*(p%4)} nt lds')
        if p % 4 == 3 and p < 15:
            a('s_add_u32 s62, s62, 8192')
            a('s_add_u32 m0, m0, 4096')
    a('s_setpc_b64 s[60:61]')

    a('L_fin:')
    if cfg.stamps:
        a('s_waitcnt vmcnt(0)')
        a('s_memrealtime s[92:93]')
        a('s_waitcnt lgkmcnt(0)')
        a('v_mov_b32 v8, s90\nv_mov_b32 v9, s91\nv_mov_b32 v10, s92\nv_mov_b32 v11, s93')
        a('s_lshl_b32 s50, s2, 3\ns_add_u32 s50, s50, s44\ns_lshl_b32 s50, s50, 4')
        a(f's_add_u32 s50, s50, {256*PART}')
        a('v_mov_b32 v12, 0')
        a('buffer_store_dwordx4 v[8:11], v12, s[40:43], s50 offen')
    if cfg.steps:
        a('s_waitcnt vmcnt(0)')
        stamp(125)
        a('v_writelane_b32 v2, s88, 63')
        a('s_lshl_b32 s50, s2, 3\ns_add_u32 s50, s50, s44\ns_lshl_b32 s50, s50, 9')
        a(f's_add_u32 s50, s50, {256*PART}')
        a('v_lshlrev_b32 v12, 2, v0')
        a('buffer_store_dword v1, v12, s[40:43], s50 offen')
        a('buffer_store_dword v2, v12, s[40:43], s50 offen offset:256')
    a('L_end:')
    a('s_endpgm')
    main_lines, nn = hazard.fix(a.L)

    red_lines = reduce_kernel()
    K1 = 'mha_main_kernel'; K2 = 'mha_reduce_kernel'
    txt = header([(K1, 256, 512, 163840), (K2, 672, 256, 0)])
    txt += kstart(K1) + '\n'.join(main_lines) + '\n' + kstart(K2) + '\n'.join(red_lines) + '\n'
    txt += RODATA + kdesc(K1, 256, 96) + '.p2align 6\n' + kdesc(K2, 52, 32)
    return txt, T

if __name__ == '__main__':
    cfg = Cfg()
    out = sys.argv[1] if len(sys.argv) > 1 else 'main.s'
    for kv in sys.argv[2:]:
        k, v = kv.split('=')
        setattr(cfg, k, eval(v))
    txt, T = gen(cfg)
    open(out, 'w').write(txt)
    if '-v' in sys.argv[0:1]: pass
```

```python
import sys, struct
from asmlib import *
import hazard

SLOT = 16384
OBASE = 7 * SLOT
XBASE = 4 * SLOT
PART = 86016
C_EXP = 0.09016844005556021
def f32(x): return '0x%08x' % struct.unpack('<I', struct.pack('<f', x))[0]

class Cfg:
    LW = 3
    head = {-1: 'Q P X X X X X X X Q Q', 0: 'Q', 1: 'K', 2: 'K Q', 3: 'Q Q', 4: 'K', 5: 'K Q', 6: 'Q Q', 7: 'K', 8: 'K Q', 9: 'Q Q', 10: 'Q', 11: 'K'}
    xread = [0, 0, 0, 0, 0, 0, 0]
    opA = [46, 47, 49, 50, 52, 53, 55, 56, 58, 59, 61, 62, 64, 65, 67, 68]
    opB = [70, 71, 72, 73, 74, 75, 76, 77]
    split_end = 40
    ntfirst = True
    codepf = True
    stamps = False
    steps = False
    thr = 8.0
    prio_att = 2
    prio_ld = 3

def schedule(cfg):
    kv = [(c, h, t) for h in range(2) for c in 'KV' for t in range(16)]
    w = [('Q', 0, i) for i in range(14)] + [('Q', 1, i) for i in range(14)] + [('O', 0, t) for t in range(16)] + [('O', 1, t) for t in range(16)]
    T = {}
    for i, k in enumerate(kv): T[k] = dict(need=14 + i, consume=14 + i)
    for i in range(14):
        T[('Q', 0, i)] = dict(need=i, consume=i)
        T[('Q', 1, i)] = dict(need=14 + 2 * i, consume=15 + 2 * i)
    for t in range(16):
        T[('O', 0, t)] = dict(need=cfg.opA[t], consume=cfg.opA[t])
        if t < 8: T[('O', 1, t)] = dict(need=cfg.opB[t], consume=cfg.opB[t])
        else: T[('O', 1, t)] = dict(need=78 if t < 13 else 79, consume=1000)
    for i in range(7): T[('X', 0, i)] = dict(need=cfg.xread[i], consume=cfg.xread[i], slot=None)
    T[('P', 0, 0)] = dict(need=10**6, consume=10**6, issue=-1, slot=None)
    limit = {7: 36, 8: 36, 9: 44}
    busy = {}
    for sl in range(4, 10):
        lo, hi = (sl - 4) * SLOT, (sl - 3) * SLOT
        busy[sl] = max(cfg.xread[i] for i in range(7) if i * 12288 < hi and (i + 1) * 12288 > lo)
    order = {}
    ikv = iw = ix = 0
    hend = max(cfg.head)
    for s in range(-1, 79):
        order[s] = []
        def free(k, prefer_hi):
            cons = T[k]['consume']
            c = [sl for sl in range(10) if busy.get(sl, -10) < s and (cons <= limit.get(sl, 10**9) or (sl == 7 and s >= 78))]
            if not c: return None
            return max(c) if prefer_hi else min(c)
        def put(k, sl):
            T[k]['issue'] = s; T[k]['slot'] = sl; busy[sl] = T[k]['consume']; order[s].append(k)
        if s <= hend:
            for nm in cfg.head.get(s, '').split():
                if nm == 'P': order[s].append(('P', 0, 0))
                elif nm == 'X':
                    T[('X', 0, ix)]['issue'] = s; order[s].append(('X', 0, ix)); ix += 1
                elif nm == 'Q':
                    sl = free(w[iw], False); assert sl is not None, (s, nm)
                    put(w[iw], sl); iw += 1
                elif nm == 'K':
                    sl = free(kv[ikv], True); assert sl is not None, (s, nm)
                    put(kv[ikv], sl); ikv += 1
            continue
        n_w = 0
        while iw < len(w):
            k = w[iw]
            res = sum(1 for kk in w[:iw] if T[kk]['consume'] >= s)
            kv_done = ikv >= len(kv)
            lw = cfg.LW if not kv_done else 8
            if res >= lw or (T[k]['need'] - s > (2 * cfg.LW if not kv_done else 100)): break
            if n_w >= (3 if s == 78 else 2): break
            sl = free(k, False)
            if sl is None: break
            put(k, sl); iw += 1; n_w += 1
        n_kv = 0
        while ikv < len(kv):
            k = kv[ikv]
            if n_kv >= 1: break
            held = sum(1 for kk in kv[:ikv] if T[kk]['consume'] >= s and T[kk]['slot'] < 7)
            sl = free(k, True)
            if sl is None: break
            if sl < 7 and held >= 7 - cfg.LW: break
            put(k, sl); ikv += 1; n_kv += 1
    for k, v in T.items():
        assert 'issue' in v and v['issue'] < v['need'], (k, v)
    return T, order

def nibbles(slots):
    v = 0
    for i, s in enumerate(slots): v |= s << (4 * i)
    return v & 0xffffffff, v >> 32

class Q:
    def __init__(self): self.q = []
    def issue(self, key, n=1): self.q += [key] * n
    def wait_for(self, pred):
        idx = [i for i, k in enumerate(self.q) if pred(k)]
        if not idx: return None
        n = len(self.q) - 1 - idx[-1]
        self.q = self.q[idx[-1] + 1:]
        return n
    def cap(self, maxn):
        if len(self.q) > maxn:
            self.q = self.q[len(self.q) - maxn:]
            return maxn
        return None

def gen(cfg):
    T, order = schedule(cfg)
    a = Asm()
    def stamp(i):
        if not cfg.steps: return
        a('s_memtime s[94:95]')
        a('s_waitcnt lgkmcnt(0)')
        a(f'v_writelane_b32 v{1 + i // 64}, s94, {i % 64}')
    a('L_start:')
    a('s_cmp_ge_u32 s2, 256')
    a('s_cbranch_scc1 L_end')
    a('s_load_dwordx16 s[4:19], s[0:1], 0')
    if cfg.stamps: a('s_memrealtime s[90:91]')
    if cfg.steps: a('s_memtime s[88:89]\ns_memrealtime s[86:87]')
    a('v_lshrrev_b32 v1, 6, v0')
    a('v_readfirstlane_b32 s44, v1')
    a('v_and_b32 v0, 63, v0')
    a('s_and_b32 s48, s2, 7')
    a('s_lshr_b32 s49, s2, 3')
    a('s_and_b32 s47, s49, 15')
    a('s_and_b32 s50, s48, 1')
    a('s_lshl_b32 s50, s50, 4')
    a('s_add_u32 s45, s50, s47')
    a('s_lshr_b32 s50, s48, 1')
    a('s_lshl_b32 s50, s50, 1')
    a('s_lshr_b32 s51, s49, 4')
    a('s_add_u32 s46, s50, s51')
    a('s_lshl_b32 s52, s51, 2')
    a('s_add_u32 s52, s52, s47')
    for _ in range(2): a('s_cmp_ge_u32 s52, 7\ns_cselect_b32 s50, 7, 0\ns_sub_u32 s52, s52, s50')
    a('s_and_b32 s53, s47, 7')
    a('v_lshrrev_b32 v3, 4, v0')
    a('v_and_b32 v4, 15, v0')
    a('s_and_b32 s50, s44, 3')
    a('s_cmp_eq_u32 s50, 3\ns_cbranch_scc1 L_loader')

    a('s_mov_b32 s56, s50')
    a('s_lshr_b32 s65, s44, 2')
    a('v_lshrrev_b32 v16, 2, v4')
    a('v_lshrrev_b32 v17, 1, v3')
    a('v_lshlrev_b32 v17, 3, v17')
    a('v_add_u32 v17, v17, v16')
    a('v_lshlrev_b32 v5, 8, v17')
    a('v_lshlrev_b32 v16, 6, v16')
    a('v_add_u32 v5, v5, v16')
    a('v_and_b32 v16, 1, v3')
    a('v_lshlrev_b32 v16, 5, v16')
    a('v_add_u32 v5, v5, v16')
    a('v_and_b32 v16, 1, v0')
    a('v_lshlrev_b32 v16, 4, v16')
    a('v_add_u32 v5, v5, v16')
    a('v_and_b32 v16, 2, v0')
    a('v_lshlrev_b32 v16, 2, v16')
    a('v_add_u32 v5, v5, v16')
    a('v_and_b32 v16, 0x13, v0')
    a('v_and_b32 v17, 4, v0')
    a('v_lshlrev_b32 v17, 1, v17')
    a('v_or_b32 v16, v16, v17')
    a('v_and_b32 v17, 8, v0')
    a('v_lshrrev_b32 v17, 1, v17')
    a('v_or_b32 v16, v16, v17')
    a('v_lshlrev_b32 v6, 9, v16')
    a('v_and_b32 v16, 15, v16')
    a('v_lshrrev_b32 v17, 5, v0')
    a('v_xor_b32 v16, v16, v17')
    a('v_lshlrev_b32 v16, 4, v16')
    a('v_add_u32 v6, v6, v16')
    a('v_and_b32 v16, 31, v0')
    a('v_lshrrev_b32 v18, 1, v16')
    a('v_and_b32 v18, 7, v18')
    a('v_xor_b32 v18, v18, v17')
    a('v_lshlrev_b32 v18, 4, v18')
    a('v_lshlrev_b32 v16, 7, v16')
    a('v_add_u32 v16, v16, v18')
    a('s_lshl_b32 s50, s56, 12')
    a(f's_add_u32 s50, s50, {XBASE}')
    a('v_add_u32 v128, s50, v16')
    for ks in range(1, 4): a(f'v_xor_b32 v{128+ks}, {ks<<5}, v128')
    for ks in range(4): a(f'v_add_u32 v{132+ks}, {4*12288}, v{128+ks}')
    a('v_lshlrev_b32 v15, 4, v0')
    a('s_lshl_b32 s50, s56, 13')
    a(f's_add_u32 s50, s50, {OBASE}')
    a('v_add_u32 v15, s50, v15')
    a(f's_mov_b32 s72, {f32(C_EXP)}')
    a('s_mov_b32 s73, s72')
    a('s_mov_b32 s83, 0xffff0000')
    a('s_mov_b32 s84, 0x3f803f80')
    a('s_mov_b32 s82, 0')
    def set_tbl(dst, slots):
        lo, hi = nibbles(slots)
        a(f's_mov_b32 s{dst}, 0x{lo:x}\ns_mov_b32 s{dst+1}, 0x{hi:x}')
    def tbls(h):
        set_tbl(66, [T[('Q', h, i)]['slot'] for i in range(14)])
        set_tbl(68, [T[('K', h, i)]['slot'] for i in range(16)])
        set_tbl(70, [T[('V', h, i)]['slot'] for i in range(16)])
    def xreads(s):
        L = []
        for i in range(7):
            if cfg.xread[i] == s:
                for ks in range(4):
                    r = 144 + 16 * i + 4 * ks
                    base = 128 if i < 4 else 132
                    L.append(f'ds_read_b128 v[{r}:{r+3}], v{base+ks} offset:{(i % 4) * 12288}')
        return L
    a('s_waitcnt lgkmcnt(0)')
    a('s_mov_b32 s40, s18\ns_mov_b32 s41, s19')
    a(f's_mov_b32 s42, {256 * PART + (1 << 20)}\ns_mov_b32 s43, 0x20000')
    a('s_cmp_eq_u32 s65, 0\ns_cbranch_scc1 L_roleA')
    if cfg.codepf:
        a('s_cmp_eq_u32 s56, 0\ns_cbranch_scc0 L_nopf')
        a('s_getpc_b64 s[20:21]')
        a('L_pc:')
        a('s_sub_u32 s20, s20, L_pc-L_start')
        a('s_subb_u32 s21, s21, 0')
        a('s_mov_b32 s22, L_codeend-L_start')
        a('s_mov_b32 s23, 0x20000')
        a('s_lshl_b32 s50, s49, 11')
        a('v_lshlrev_b32 v16, 4, v0')
        a('buffer_load_dwordx4 v[20:23], v16, s[20:23], s50 offen')
        a('buffer_load_dwordx4 v[24:27], v16, s[20:23], s50 offen offset:1024')
        a('L_nopf:')
    for s in range(14):
        a('s_barrier')
        xr = xreads(s)
        if xr:
            for x in xr: a(x)
            a('s_waitcnt lgkmcnt(0)')
    a('s_waitcnt vmcnt(0)')
    tbls(1)
    a('s_branch L_qp')
    a('L_roleA:')
    tbls(0)
    a('L_qp:')

    FB = 16
    lq = Q()
    def waitl(pred):
        n = lq.wait_for(pred)
        if n is not None: a(f's_waitcnt lgkmcnt({min(n, 15)})')
    def next_slot(tbl):
        a(f's_and_b32 s50, s{tbl}, 15')
        a(f's_lshr_b64 s[{tbl}:{tbl+1}], s[{tbl}:{tbl+1}], 4')
        a('s_lshl_b32 s50, s50, 14')
    def t_tile(tbl, acc0, bfrag, first, dbouter):
        def post():
            next_slot(tbl)
            a('v_add_u32 v8, s50, v5')
            for db in range(1, 4): a(f'v_xor_b32 v{8+db}, {db<<6}, v8')
        seq = [(ks, db) for db in range(4) for ks in range(4)] if dbouter else [(ks, db) for ks in range(4) for db in range(4)]
        units = []
        for i, (ks, db) in enumerate(seq):
            r = FB + 4 * (i % 4); d = acc0 + 16 * db; b = bfrag(ks)
            c = '0' if (first and ks == 0) else f'v[{d}:{d+15}]'
            units.append(([f'ds_read_b64_tr_b16 v[{r}:{r+1}], v{8+db} offset:{ks*4096}',
                           f'ds_read_b64_tr_b16 v[{r+2}:{r+3}], v{8+db} offset:{ks*4096+1024}'],
                          f'v_mfma_f32_32x32x16_bf16 v[{d}:{d+15}], v[{r}:{r+3}], v[{b}:{b+3}], {c}'))
        return dict(post=post, units=units, fill={}, flush=False, mid=None, end=None, extra=None)
    def k_tile(t):
        def post():
            next_slot(68)
            a('v_add_u32 v8, s50, v6')
        seq = [e + 8 * u for e in range(8) for u in range(2)]
        acc = 96 + 16 * (t % 2)
        units = []
        for i, ks in enumerate(seq):
            r = FB + 4 * (i % 4); e = ks & 7
            ar = 8 if e == 0 else 9 + (e % 2)
            rd = []
            if ks < 8 and e: rd.append(f'v_xor_b32 v{ar}, {e<<5}, v8')
            rd.append(f'ds_read_b128 v[{r}:{r+3}], v{ar} offset:{(ks>>3)*256}')
            c = ('0' if t < 2 else 'v[240:255]') if i == 0 else f'v[{acc}:{acc+15}]'
            units.append((rd, f'v_mfma_f32_32x32x16_bf16 v[{acc}:{acc+15}], v[{r}:{r+3}], v[{32+4*ks}:{35+4*ks}], {c}'))
        return dict(post=post, units=units, fill={}, flush=False, mid=None, end=None, extra=None)
    def spread(tile, L, lo, hi):
        n = hi - lo + 1
        for j, f in enumerate(L):
            tile['fill'].setdefault(lo + j * n // len(L), []).append(f)
    def emit_ins(x, key=None):
        a(x)
        if x.startswith('ds_'): lq.issue(key)
    def emit_stream(tiles):
        def rd(ti, i):
            for x in tiles[ti]['units'][i][0]: emit_ins(x, (ti, i))
        def start(ti):
            a('s_barrier')
            tiles[ti]['post']()
            if tiles[ti]['extra']: tiles[ti]['extra']()
        def unit(ti, i):
            waitl(lambda k: k == (ti, i))
            a(tiles[ti]['units'][i][1])
        def fill(ti, i):
            for f in tiles[ti]['fill'].get(i, []):
                if callable(f): f()
                else: emit_ins(f, 'w')
        start(0)
        for i in range(4): rd(0, i)
        for ti, tl in enumerate(tiles):
            last = ti == len(tiles) - 1
            for i in range(14):
                unit(ti, i)
                if i + 4 < 16: rd(ti, i + 4)
                fill(ti, i)
                if i == 7 and tl['mid']: tl['mid']()
            if tl['flush'] or last:
                for i in (14, 15):
                    unit(ti, i); fill(ti, i)
                if tl['end']: tl['end']()
                waitl(lambda k: True)
                stamp(ti)
                if tl.get('after'): tl['after']()
                if not last:
                    start(ti + 1)
                    for i in range(4): rd(ti + 1, i)
            else:
                waitl(lambda k: True)
                stamp(ti)
                start(ti + 1)
                rd(ti + 1, 0); rd(ti + 1, 1)
                unit(ti, 14); rd(ti + 1, 2); fill(ti, 14)
                unit(ti, 15); rd(ti + 1, 3); fill(ti, 15)

    tiles = []
    def bar_if_B(n=1):
        def f():
            lab = a.label('L_b')
            a(f's_cmp_eq_u32 s65, 0\ns_cbranch_scc1 {lab}')
            for _ in range(n): a('s_barrier')
            a(f'{lab}:')
        return f
    for ps in range(2):
        for t in range(7):
            tl = t_tile(66, 64, lambda ks, t=t: 144 + 16 * t + 4 * ks, t == 0, t == 6)
            tl['mid'] = bar_if_B()
            s = 7 * ps + t
            xr = xreads(s)
            if xr:
                def ex(xr=xr):
                    lab = a.label('L_x')
                    a(f's_cmp_eq_u32 s65, 0\ns_cbranch_scc0 {lab}')
                    for x in xr: a(x)
                    a(f'{lab}:')
                tl['extra'] = ex
            if t == 6:
                tl['flush'] = True
                cv = [[f'v_mul_f32 v{64+16*db+i}, s72, v{64+16*db+i}' for i in range(16)] +
                      [f'v_cvt_pk_bf16_f32 v{32+32*ps+8*db+i}, v{64+16*db+2*i}, v{65+16*db+2*i}' for i in range(8)] for db in range(4)]
                for db in range(3): spread(tl, cv[db], 4 * db + 7, min(15, 4 * db + 10))
                tl['end'] = lambda cv=cv: [a(x) for x in cv[3]]
                if ps == 1:
                    def aft():
                        bar_if_B(4)()
                        a(f's_setprio {cfg.prio_att}')
                    tl['after'] = aft
            tiles.append(tl)
    def soft(t):
        acc = 96 + 16 * (t % 2)
        H = []
        if t == 1: H += [f'v_add_f32 v{acc+i}, v7, v{acc+i}' for i in range(16)]
        H.append(f'v_max3_f32 v12, v{acc}, v{acc+1}, v{acc+2}')
        H.append(f'v_max3_f32 v3, v{acc+3}, v{acc+4}, v{acc+5}')
        for i in range(5): H.append(f'v_max3_f32 v{12 if i % 2 == 0 else 3}, v{12 if i % 2 == 0 else 3}, v{acc+6+2*i}, v{acc+7+2*i}')
        H.append(f'v_max_f32 v12, v12, v3')
        if t == 0:
            def f():
                a('v_mov_b32 v7, v12')
                a('v_permlane32_swap_b32 v7, v12')
                a('v_max_f32 v7, v7, v12')
                a('v_sub_f32 v7, 0, v7')
                a('v_mov_b32 v13, 0')
                a('v_mov_b32 v14, 0')
            H.append(f)
            H += [f'v_mov_b32 v{240+i}, v7' for i in range(16)]
            H += [f'v_add_f32 v{acc+i}, v7, v{acc+i}' for i in range(16)]
        else:
            def f():
                lab = a.label('L_ok')
                a(f'v_cmp_lt_f32 vcc, {f32(cfg.thr)}, v12')
                if t == 15: a('s_mov_b32 s82, 1')
                a('s_nop 1')
                a(f's_cbranch_vccz {lab}')
                a('s_call_b64 s[60:61], L_rescue')
                a(f'{lab}:')
            H.append(f)
        L = []
        for g in range(8):
            for i in range(2): L.append(f'v_exp_f32 v{acc+2*g+i}, v{acc+2*g+i}')
            if g > 0:
                L.append(f'v_cvt_pk_bf16_f32 v{128+8*t+g-1}, v{acc+2*g-2}, v{acc+2*g-1}')
                L.append(f'v_add_f32 v13, v13, v{acc+2*g-2}')
                L.append(f'v_add_f32 v14, v14, v{acc+2*g-1}')
        L.append(f'v_add_f32 v13, v13, v{acc+14}')
        L.append(f'v_cvt_pk_bf16_f32 v{128+8*t+7}, v{acc+14}, v{acc+15}')
        L.append(f'v_add_f32 v14, v14, v{acc+15}')
        return H, L
    for t in range(16):
        tl = k_tile(t)
        if t: spread(tl, soft(t - 1)[0] + soft(t - 1)[1], 3, 15)
        if t == 15:
            tl['flush'] = True
            def e():
                for f in soft(15)[0]:
                    if callable(f): f()
                    else: a(f)
            tl['end'] = e
        tiles.append(tl)
    def norm(hf, db):
        L = [f'v_mul_f32 v{32+16*db+i}, v13, v{32+16*db+i}' for i in range(16)]
        L += [f'v_cvt_pk_bf16_f32 v{96+8*db+i}, v{32+16*db+2*i}, v{33+16*db+2*i}' for i in range(8)]
        L += [f'ds_write_b128 v15, v[{96+8*db+4*u}:{99+8*db+4*u}] offset:{hf*24576 + (2*db+u)*1024}' for u in range(2)]
        return L
    for hf in range(2):
        for t in range(8):
            tl = t_tile(70, 32, lambda ks, t=t: 128 + 16 * t + 4 * ks, t == 0, t == 7)
            if hf == 0 and t == 0: spread(tl, soft(15)[1], 0, 15)
            if hf == 0 and t == 1:
                spread(tl, ['v_add_f32 v13, v13, v14', 'v_mov_b32 v14, v13', 's_nop 1', 'v_permlane32_swap_b32 v13, v14',
                            'v_add_f32 v13, v13, v14', 'v_rcp_f32 v13, v13'], 2, 7)
            if t == 7:
                tl['flush'] = True
                spread(tl, norm(hf, 0), 7, 10); spread(tl, norm(hf, 1), 11, 14)
                def e(hf=hf):
                    for x in norm(hf, 2) + norm(hf, 3): emit_ins(x, 'w')
                tl['end'] = e
            tiles.append(tl)
    emit_stream(tiles)
    a('s_setprio 0')
    a('s_cmp_eq_u32 s65, 0\ns_cbranch_scc1 L_opA')
    a('s_barrier')
    a('s_branch L_fin')

    a('L_rescue:')
    a('s_nop 15')
    a('v_mov_b32 v3, v12')
    a('v_permlane32_swap_b32 v3, v12')
    a('v_max_f32 v12, v12, v3')
    a('v_max_f32 v12, 0, v12')
    a('v_ceil_f32 v12, v12')
    a('v_sub_f32 v7, v7, v12')
    for r in range(96, 128): a(f'v_sub_f32 v{r}, v{r}, v12')
    a('v_sub_f32 v12, 0, v12')
    a('v_exp_f32 v12, v12')
    a('v_mul_f32 v13, v13, v12')
    a('v_mul_f32 v14, v14, v12')
    def resc(r):
        a(f'v_lshlrev_b32 v3, 16, v{r}')
        a(f'v_and_b32 v4, s83, v{r}')
        a('v_mul_f32 v3, v3, v12')
        a('v_mul_f32 v4, v4, v12')
        a(f'v_cvt_pk_bf16_f32 v{r}, v3, v4')
    for r in range(128, 240): resc(r)
    a('s_cmp_eq_u32 s82, 0\ns_cbranch_scc1 L_resc_blk')
    for r in range(240, 248): resc(r)
    a('s_nop 1')
    a('s_setpc_b64 s[60:61]')
    a('L_resc_blk:')
    for r in range(240, 256): a(f'v_mov_b32 v{r}, v7')
    a('s_nop 1')
    a('s_setpc_b64 s[60:61]')

    def op_setup():
        a('s_mul_i32 s74, s44, 3')
        a('s_add_u32 s74, s74, 1')
        a('s_cmp_eq_u32 s44, 0\ns_cselect_b32 s74, 0, s74')
        a('s_add_u32 s75, s44, 1\ns_and_b32 s75, s75, 2')
        a('v_lshrrev_b32 v21, 4, v0')
        a('v_and_b32 v22, 15, v0')
        a('v_lshrrev_b32 v23, 2, v22')
        a('v_lshrrev_b32 v24, 1, v21')
        a('v_lshlrev_b32 v24, 3, v24')
        a('v_add_u32 v24, v24, v23')
        a('v_mul_u32_u24 v25, 896, v24')
        a('v_and_b32 v24, 1, v21')
        a('v_lshlrev_b32 v24, 5, v24')
        a('v_add_u32 v25, v25, v24')
        a('v_and_b32 v24, 1, v0')
        a('v_lshlrev_b32 v24, 4, v24')
        a('v_add_u32 v25, v25, v24')
        a('v_and_b32 v24, 2, v0')
        a('v_lshlrev_b32 v24, 2, v24')
        a('v_add_u32 v25, v25, v24')
        a('v_lshrrev_b32 v23, 1, v23')
        a('v_xor_b32 v24, s74, v23')
        a('v_lshlrev_b32 v24, 6, v24')
        a('v_add_u32 v6, v25, v24')
        a('s_add_u32 s50, s74, 1')
        a('v_xor_b32 v24, s50, v23')
        a('v_lshlrev_b32 v24, 6, v24')
        a('v_add_u32 v7, v25, v24')
        a('v_lshlrev_b32 v15, 4, v0')
        a('s_lshl_b32 s80, s45, 3')
        a('s_add_u32 s80, s80, s46')
        a(f's_mul_i32 s80, s80, {PART}')
        a(f's_mul_i32 s51, s74, {3*2048}')
        a('s_add_u32 s80, s80, s51')
    def op_call(task, t):
        k = ('O', task, t)
        a(f's_mov_b32 s76, {T[k]["slot"]*SLOT}')
        a(f's_add_u32 s77, s53, {t & 7}')
        a(f's_mov_b32 s78, {OBASE + (t >> 3) * 24576}')
        a(f's_call_b64 s[60:61], {"L_opstep0" if (task == 0 and t == 0) else "L_opstep"}')
    opmap = {}
    for t in range(16): opmap.setdefault(cfg.opA[t], []).append((0, t))
    for t in range(8): opmap.setdefault(cfg.opB[t], []).append((1, t))
    a('L_opA:')
    op_setup()
    a('L_op46:')
    for s in range(46, 78):
        a('s_barrier')
        for task, t in opmap.get(s, []): op_call(task, t)
        stamp(s)
    a('s_barrier')
    tq = Q()
    def twait(pred):
        n = tq.wait_for(pred)
        if n is not None: a(f's_waitcnt lgkmcnt({min(n, 15)})')
    def tail_reads(g, t):
        par = t & 1
        k = ('O', 1, t)
        a(f's_add_u32 s77, s53, {t & 7}')
        a('s_and_b32 s77, s77, 7')
        a('s_lshl_b32 s77, s77, 10')
        a(f's_add_u32 s77, s77, {OBASE + 24576}')
        a('v_add_u32 v10, s77, v15')
        a(f'v_add_u32 v8, {T[k]["slot"]*SLOT}, v6')
        a(f'v_add_u32 v9, {T[k]["slot"]*SLOT}, v7')
        for u in range(2):
            r = 40 + 8 * par + 4 * u
            a(f'ds_read_b64_tr_b16 v[{r}:{r+1}], v{8+u} offset:{g*128}'); tq.issue((g, t))
            a(f'ds_read_b64_tr_b16 v[{r+2}:{r+3}], v{8+u} offset:{g*128+3584}'); tq.issue((g, t))
        for qb in range(3):
            r = 16 + 12 * par + 4 * qb
            a(f'ds_read_b128 v[{r}:{r+3}], v10 offset:{qb*8192}'); tq.issue((g, t))
    def store_tile(i, qb):
        d = 64 + 16 * (3 * i + qb)
        L = [f'v_cvt_pk_bf16_f32 v{d+j}, v{d+2*j}, v{d+2*j+1}' for j in range(8)]
        L.append(f's_add_u32 s81, s80, {(3*i+qb)*2048}')
        L.append(f'buffer_store_dwordx4 v[{d}:{d+3}], v15, s[40:43], s81 offen')
        L.append(f'buffer_store_dwordx4 v[{d+4}:{d+7}], v15, s[40:43], s81 offen offset:1024')
        return L
    seq = [(g, t) for g in range(2) for t in range(8, 16)]
    tail_reads(*seq[0])
    st0 = [x for i in range(2) for qb in range(3) for x in store_tile(i, qb)]
    for n, (g, t) in enumerate(seq):
        if n + 1 < len(seq):
            if seq[n + 1] == (0, 13): a('s_barrier')
            tail_reads(*seq[n + 1])
        twait(lambda k: k == (g, t))
        par = t & 1
        lab = None
        for u in range(2):
            i = 2 * g + u
            if i == 3:
                lab = a.label('L_t3')
                a(f's_cmp_lg_u32 s75, 0\ns_cbranch_scc1 {lab}')
            for qb in range(3):
                d = 64 + 16 * (3 * i + qb)
                a(f'v_mfma_f32_32x32x16_bf16 v[{d}:{d+15}], v[{40+8*par+4*u}:{43+8*par+4*u}], v[{16+12*par+4*qb}:{19+12*par+4*qb}], v[{d}:{d+15}]')
                if g == 1 and u == 0 and t > 8:
                    idx = (t - 9) * 3 + qb
                    for x in st0[idx * len(st0) // 21:(idx + 1) * len(st0) // 21]: a(x)
        if lab: a(f'{lab}:')
    a('s_nop 15')
    for qb in range(3):
        for x in store_tile(2, qb): a(x)
    a('s_cmp_lg_u32 s75, 0\ns_cbranch_scc1 L_fin')
    for qb in range(3):
        for x in store_tile(3, qb): a(x)
    a('s_branch L_fin')

    for first in (True, False):
        a('L_opstep0:' if first else 'L_opstep:')
        a('s_and_b32 s77, s77, 7')
        a('s_lshl_b32 s77, s77, 10')
        a('s_add_u32 s77, s77, s78')
        a('v_add_u32 v10, s77, v15')
        a('v_add_u32 v8, s76, v6')
        a('v_add_u32 v9, s76, v7')
        def rdA(i):
            r = 32 + 4 * i
            a(f'ds_read_b64_tr_b16 v[{r}:{r+1}], v{8+(i%2)} offset:{(i//2)*128}')
            a(f'ds_read_b64_tr_b16 v[{r+2}:{r+3}], v{8+(i%2)} offset:{(i//2)*128+3584}')
        rdA(0)
        for qb in range(3): a(f'ds_read_b128 v[{16+4*qb}:{19+4*qb}], v10 offset:{qb*8192}')
        rdA(1); rdA(2); rdA(3)
        lab = a.label('L_skip')
        for i in range(4):
            if i == 3: a(f's_cmp_lg_u32 s75, 0\ns_cbranch_scc1 {lab}')
            for qb in range(3):
                if i == 0: a(f's_waitcnt lgkmcnt({8-qb})')
                elif qb == 0: a(f's_waitcnt lgkmcnt({6-2*i})')
                d = 64 + 16 * (3 * i + qb)
                c = '0' if first else f'v[{d}:{d+15}]'
                a(f'v_mfma_f32_32x32x16_bf16 v[{d}:{d+15}], v[{32+4*i}:{35+4*i}], v[{16+4*qb}:{19+4*qb}], {c}')
        a(f'{lab}:')
        a('s_waitcnt lgkmcnt(0)')
        a('s_setpc_b64 s[60:61]')

    a('L_loader:')
    a(f's_setprio {cfg.prio_ld}')
    a('s_cmp_eq_u32 s44, 3\ns_cselect_b32 s54, 1, 0')
    a('v_lshlrev_b32 v5, 2, v3')
    a('v_xor_b32 v5, v5, v4')
    a('v_lshlrev_b32 v5, 4, v5')
    a('v_lshlrev_b32 v6, 13, v3')
    a('v_add_u32 v64, v5, v6')
    for q in range(1, 4): a(f'v_add_u32 v{64+q}, {q*(4*8192-1024)}, v64')
    a('v_lshrrev_b32 v6, 3, v0')
    a('v_mul_u32_u24 v6, 896, v6')
    a('v_and_b32 v7, 7, v0')
    a('v_xor_b32 v7, v7, v3')
    a('v_lshlrev_b32 v8, 4, v7')
    a('v_add_u32 v68, v6, v8')
    a('v_xor_b32 v7, 4, v7')
    a('v_lshlrev_b32 v8, 4, v7')
    a('v_add_u32 v69, v6, v8')
    a('s_lshl_b32 s55, s46, 10')
    a('s_lshl_b32 s50, s54, 18')
    a('s_add_u32 s55, s55, s50')
    a(f's_mul_i32 s56, s45, {96*896}')
    a(f's_mul_i32 s50, s54, {48*896}')
    a('s_add_u32 s56, s56, s50')
    a('s_lshl_b32 s57, s45, 3')
    a('s_add_u32 s57, s57, s46')
    a('s_lshl_b32 s57, s57, 19')
    a('s_lshl_b32 s63, s54, 13')
    a('s_add_u32 s58, s57, s63')
    a('s_add_u32 s59, s58, s63')
    a(f's_mul_i32 s64, s54, 7168')
    a(f's_mul_i32 s79, s46, {512*896}')
    a('s_add_u32 s79, s79, s64')
    a(f's_mul_i32 s65, s54, 6144')
    a('s_waitcnt lgkmcnt(0)')
    def srd(d, src, nbytes):
        a(f's_mov_b32 s{d}, s{src}\ns_mov_b32 s{d+1}, s{src+1}\ns_mov_b32 s{d+2}, {nbytes}\ns_mov_b32 s{d+3}, 0x20000')
    srd(32, 10, 448 * 8192); srd(20, 4, 32 * 96 * 896); srd(24, 6, 1 << 27); srd(28, 8, 1 << 27)
    srd(36, 12, 4096 * 896); srd(40, 18, 256 * PART + (1 << 20))
    stamp(100)
    def late_setup():
        a('v_lshrrev_b32 v6, 5, v0')
        a('v_and_b32 v7, 31, v0')
        a('v_lshlrev_b32 v8, 9, v6')
        for p in range(8):
            a(f'v_add_u32 v9, {2*p}, v6')
            a('v_xor_b32 v9, v9, v7')
            a('v_lshlrev_b32 v9, 4, v9')
            a(f'v_add_u32 v{72+p}, v9, v8')
        a('v_lshlrev_b32 v6, 9, v3')
        a('v_add_u32 v80, v5, v6')
        for q in range(1, 4): a(f'v_add_u32 v{80+q}, {1024*q}, v80')
        for p in range(7):
            a(f'v_add_u32 v6, {64*p}, v0')
            a('v_subrev_u32 v7, 224, v6')
            a('v_cmp_le_u32 vcc, 224, v6')
            a('v_cndmask_b32 v6, v6, v7, vcc')
            a('v_cmp_le_u32 vcc, 112, v6')
            a('v_cndmask_b32 v6, 0, 4, vcc')
            a('v_xor_b32 v6, v6, v0')
            a(f'v_lshlrev_b32 v{84+p}, 4, v6')
    def rot7(t, dst):
        a(f's_add_u32 s{dst}, s52, {t}')
        a(f's_cmp_ge_u32 s{dst}, 7')
        a(f's_cselect_b32 s50, 7, 0')
        a(f's_sub_u32 s{dst}, s{dst}, s50')
    def issue(k, half2):
        c, h, t = k
        if c == 'Q':
            rot7(t % 7, 62)
            a('s_lshl_b32 s62, s62, 19')
            a('s_add_u32 s62, s62, s55')
            off = h * 512 + (t // 7) * 256 + (half2 << 18)
            if off: a(f's_add_u32 s62, s62, {off}')
            a(f's_add_u32 m0, s63, {T[k]["slot"]*SLOT + half2*8192}')
            nt = cfg.ntfirst and t % 7 == 0 and not (h == 0 and t == 7)
            a(f's_call_b64 s[60:61], L_issQ{"n" if nt else ""}'); return 8
        if c == 'P':
            a(f's_mul_i32 s62, s47, {28*8192}')
            a('s_lshl_b32 s50, s54, 17')
            a('s_add_u32 s62, s62, s50')
            a('s_lshl_b32 s50, s46, 10')
            a('s_add_u32 s62, s62, s50')
            a('s_add_u32 s62, s62, 256')
            for q in range(4): a(f'buffer_load_dwordx4 v[{96+4*q}:{99+4*q}], v{64+q}, s[32:35], s62 offen offset:{1024*q} nt')
            return 4
        if c == 'X':
            rot7(t, 62)
            a('s_lshl_b32 s62, s62, 7')
            a('s_add_u32 s62, s62, s56')
            a(f's_add_u32 m0, s65, {XBASE + t*12288}')
            a('s_call_b64 s[60:61], L_issX'); return 6
        if c == 'K':
            a(f's_add_u32 s62, s58, {h*262144 + t*16384 + half2*8192}')
            a(f's_add_u32 m0, s63, {T[k]["slot"]*SLOT + half2*8192}')
            a('s_call_b64 s[60:61], L_issK'); return 8
        if c == 'V':
            a(f's_add_u32 s62, s59, {h*262144 + (t%8)*32768 + (t//8)*256 + half2*16384}')
            a(f's_add_u32 m0, s63, {T[k]["slot"]*SLOT + half2*8192}')
            a('s_call_b64 s[60:61], L_issV'); return 8
        if c == 'O':
            a(f's_add_u32 s62, s53, {t & 7}')
            a('s_and_b32 s62, s62, 7')
            a(f's_mul_i32 s62, s62, {16*896}')
            a('s_add_u32 s62, s62, s79')
            a(f's_add_u32 s62, s62, {(h*256 + (t>>3)*128)*896 + half2*7168}')
            a(f's_add_u32 m0, s64, {T[k]["slot"]*SLOT + half2*7168}')
            nt = cfg.ntfirst and t % 8 == 0
            a(f's_call_b64 s[60:61], L_issO{"n" if nt else ""}'); return 7
    vm = Q()
    def loader_step(s, both):
        if s >= 0: a('s_barrier')
        for k in order[s]:
            if k == ('X', 0, 2): late_setup()
            for h2 in range(2 if both else 1):
                n = vm.cap(55)
                if n is not None: a(f's_waitcnt vmcnt({n})')
                vm.issue(k, issue(k, h2))
            if s == -1: stamp(101 + order[s].index(k))
        n = vm.wait_for(lambda k: T[k]['need'] <= s + 1)
        if n is not None: a(f's_waitcnt vmcnt({n})')
        stamp(s if s >= 0 else 126)
    for s in range(-1, cfg.split_end + 1): loader_step(s, False)
    a('s_cmp_eq_u32 s54, 0\ns_cbranch_scc1 L_solo')
    vx = Q(); vx.q = list(vm.q)
    for s in range(cfg.split_end + 1, 46):
        a('s_barrier')
        if s == cfg.split_end + 1:
            a('s_setprio 0')
            op_setup()
        n = vx.wait_for(lambda k: T[k]['need'] <= s + 1 or s == 45)
        if n is not None: a(f's_waitcnt vmcnt({n})')
        stamp(s)
    a('s_branch L_op46')
    a('L_solo:')
    for s in range(cfg.split_end + 1, 79): loader_step(s, True)
    a('s_barrier')
    a('s_branch L_fin')
    def sub(name, n, vbase, vmod, srdn, sstep, flags):
        a(f'{name}:')
        for p in range(n):
            a(f'buffer_load_dwordx4 v{vbase + p % vmod}, s[{srdn}:{srdn+3}], s62 offen offset:{1024*(p%4)}{flags} lds')
            if p % 4 == 3 and p < n - 1:
                a(f's_add_u32 s62, s62, {sstep}')
                a('s_add_u32 m0, m0, 4096')
        a('s_setpc_b64 s[60:61]')
    sub('L_issQ', 8, 64, 4, 32, 1 << 17, ''); sub('L_issQn', 8, 64, 4, 32, 1 << 17, ' nt')
    sub('L_issK', 8, 72, 8, 24, 4096, ' nt'); sub('L_issV', 8, 80, 4, 28, 8192, ' nt')
    sub('L_issO', 7, 84, 7, 36, 4096, ''); sub('L_issOn', 7, 84, 7, 36, 4096, ' nt')
    a('L_issX:')
    for p in range(6):
        a(f'buffer_load_dwordx4 v{68 + p % 2}, s[20:23], s62 offen nt lds')
        if p < 5:
            a('s_add_u32 s62, s62, 7168')
            a('s_add_u32 m0, m0, 1024')
    a('s_setpc_b64 s[60:61]')

    a('L_fin:')
    if cfg.stamps:
        a('s_waitcnt vmcnt(0)')
        a('s_memrealtime s[92:93]')
        a('s_waitcnt lgkmcnt(0)')
        a('v_mov_b32 v8, s90\nv_mov_b32 v9, s91\nv_mov_b32 v10, s92\nv_mov_b32 v11, s93')
        a('s_lshl_b32 s50, s2, 3\ns_add_u32 s50, s50, s44\ns_lshl_b32 s50, s50, 4')
        a(f's_add_u32 s50, s50, {256*PART}')
        a('v_mov_b32 v12, 0')
        a('buffer_store_dwordx4 v[8:11], v12, s[40:43], s50 offen')
    if cfg.steps:
        stamp(124)
        a('s_waitcnt vmcnt(0)')
        stamp(125)
        a('v_writelane_b32 v2, s88, 63')
        a('s_memrealtime s[94:95]')
        a('s_waitcnt lgkmcnt(0)')
        a('s_sub_u32 s94, s94, s86')
        a('v_writelane_b32 v2, s94, 59')
        a('s_lshl_b32 s50, s2, 3\ns_add_u32 s50, s50, s44\ns_lshl_b32 s50, s50, 9')
        a(f's_add_u32 s50, s50, {256*PART}')
        a('v_lshlrev_b32 v12, 2, v0')
        a('buffer_store_dword v1, v12, s[40:43], s50 offen')
        a('buffer_store_dword v2, v12, s[40:43], s50 offen offset:256')
    a('L_end:')
    a('s_endpgm')
    a('L_codeend:')
    main_lines, nn = hazard.fix(a.L)

    from gen_main import reduce_kernel
    red_lines = reduce_kernel()
    K1 = 'mha_main_kernel'; K2 = 'mha_reduce_kernel'
    txt = header([(K1, 256, 512, 163840), (K2, 672, 256, 0)])
    txt += kstart(K1) + '\n'.join(main_lines) + '\n' + kstart(K2) + '\n'.join(red_lines) + '\n'
    txt += RODATA + kdesc(K1, 256, 96) + '.p2align 6\n' + kdesc(K2, 52, 32)
    return txt, T, order

if __name__ == '__main__':
    cfg = Cfg()
    out = sys.argv[1] if len(sys.argv) > 1 else 'v2.s'
    for kv in sys.argv[2:]:
        k, v = kv.split('=', 1)
        setattr(cfg, k, eval(v))
    txt, T, order = gen(cfg)
    open(out, 'w').write(txt)
```
